```python
import torch

def _softmax(x, axis=-1):
    return torch.softmax(x, dim=axis)
def _gelu(x):
    return torch.nn.functional.gelu(x, approximate="tanh")
def _silu(x):
    return torch.nn.functional.silu(x)
def _sigmoid(x):
    return torch.sigmoid(x)
def _layernorm(x, axis=-1, eps=1e-5):
    m = x.mean(dim=axis, keepdim=True)
    v = x.var(dim=axis, keepdim=True, unbiased=False)
    return (x - m) / torch.sqrt(v + eps)
def _scatter_add(tgt, idx, src, axis=0):
    return tgt.clone().index_add_(axis, idx, src)
def _segment_sum(src, seg, n):
    out = torch.zeros((n,) + src.shape[1:], dtype=src.dtype)
    return out.index_add_(0, seg, src)
def _pad(x, pw):
    flat = tuple(v for pair in reversed(pw) for v in pair)
    return torch.nn.functional.pad(x, flat)

kernel_name = 'recurrent_scan__mha_block_cached__glu_gated_geglu__prompt'

def setup_inputs():

    _w = (lambda a: (lambda t: t.to(torch.bfloat16) if t.is_floating_point() else t)(torch.as_tensor(a)))
    def _A_setup():
        B, Sq, D = 1, 2048, 512
        H, Sk, Dh = 32, 2048, 128
        return {
            "x": _w((lambda *s: torch.randn(*s, dtype=torch.bfloat16) * 0.05)(B, Sq, D)),
            "k_cache": _w((lambda *s: torch.randn(*s, dtype=torch.bfloat16) * 3.2)(B, H, Sk, Dh)),
            "v_cache": _w((lambda *s: torch.randn(*s, dtype=torch.bfloat16) * 3.2)(B, H, Sk, Dh)),
            "wq": _w((lambda *s: torch.randn(*s, dtype=torch.bfloat16) * 3.2)(D, H * Dh) * (D ** -0.5)),
            "wo": _w((lambda *s: torch.randn(*s, dtype=torch.bfloat16) * 3.2)(H * Dh, D) * ((H * Dh) ** -0.5)),
        }
    _A_in = _A_setup()

    def _B_setup():
        B, S, Dm, Df = 1, 2048, 512, 1792
        return {
            "x": _w((lambda *s: torch.randn(*s, dtype=torch.bfloat16) * 0.05)(B, S, Dm)),
            "w_gate": _w((lambda *s: torch.randn(*s, dtype=torch.bfloat16) * 0.4)(Dm, Df) * (Dm ** -0.5)),
            "w_up": _w((lambda *s: torch.randn(*s, dtype=torch.bfloat16) * 0.4)(Dm, Df) * (Dm ** -0.5)),
            "w_down": _w((lambda *s: torch.randn(*s, dtype=torch.bfloat16) * 0.4)(Df, Dm) * (Df ** -0.5)),
        }
    _B_in = _B_setup()

    return {
        "A_x": _A_in["x"],
        "A_k_cache": _A_in["k_cache"],
        "A_v_cache": _A_in["v_cache"],
        "A_wq": _A_in["wq"],
        "A_wo": _A_in["wo"],
        "B_x": _B_in["x"],
        "B_w_gate": _B_in["w_gate"],
        "B_w_up": _B_in["w_up"],
        "B_w_down": _B_in["w_down"],
    }

def reference(A_x, A_k_cache, A_v_cache, A_wq, A_wo, B_x, B_w_gate, B_w_up, B_w_down):
    def _A_ref(x, k_cache, v_cache, wq, wo):
        B, Sq, D = x.shape
        H, Dh = 32, 128
        q = (lambda x, *d: x.permute(*d))((x @ wq).reshape(B, Sq, H, Dh), 0, 2, 1, 3)
        scores = torch.einsum("bhqd,bhkd->bhqk", q, k_cache) * (Dh ** -0.5)
        p = _softmax(scores, axis=-1)
        o = torch.einsum("bhqk,bhkd->bhqd", p, v_cache)
        return (lambda x, *d: x.permute(*d))(o, 0, 2, 1, 3).reshape(B, Sq, H * Dh) @ wo

    def _B_ref(x, w_gate, w_up, w_down):
        g = torch.einsum("bsd,df->bsf", x, w_gate)
        u = torch.einsum("bsd,df->bsf", x, w_up)
        h = _gelu(g) * u
        return torch.einsum("bsf,fd->bsd", h, w_down)

    x = A_x
    xn = _layernorm(x, axis=-1)
    s = _A_ref(xn, A_k_cache, A_v_cache, A_wq, A_wo)
    g = _silu(_B_ref(xn, B_w_gate, B_w_up, B_w_down))
    return x + s * g
```

```python
import math, struct, sys

OUT = "recurrent_scan__mha_block_cached__glu_gated_geglu__prompt.s"

S = 2048; D = 512; H = 32; DH = 128; DF = 1792
WS_XN = 0
WS_H = 0x200000
WS_O = 0x1000000
XN_BYTES = S * D * 2
H_BYTES = S * DF * 2
O_BYTES = S * H * DH * 2


def f32(x):
    return "0x%08x" % struct.unpack("<I", struct.pack("<f", x))[0]


class Asm:
    def __init__(self):
        self.lines = []
        self.pend = []
        self.nlabel = 0

    def e(self, s):
        self.lines.append("    " + s)

    def c(self, s):
        self.lines.append("    ; " + s)

    def label(self, name):
        self.lines.append(name + ":")

    def raw(self, s):
        self.lines.append(s)

    def lds(self, text, tag):
        self.e(text)
        self.pend.append(tag)
        assert len(self.pend) <= 15, "too many outstanding lgkm ops"

    def wait_lds(self, tag):
        if tag not in self.pend:
            return
        idx = len(self.pend) - 1 - self.pend[::-1].index(tag)
        n = len(self.pend) - idx - 1
        self.e("s_waitcnt lgkmcnt(%d)" % n)
        self.pend = self.pend[idx + 1:]

    def wait_lds_all(self):
        if self.pend:
            self.e("s_waitcnt lgkmcnt(0)")
        self.pend = []


def vr(a, n):
    return "v[%d:%d]" % (a, a + n - 1)


def sr(a, n):
    return "s[%d:%d]" % (a, a + n - 1)


def make_srd(a, d, lo, hi, nbytes, add=0):
    if add:
        a.e("s_add_u32 s%d, s%d, 0x%x" % (d, lo, add))
        a.e("s_addc_u32 s%d, s%d, 0" % (d + 1, hi))
        a.e("s_and_b32 s%d, s%d, 0xffff" % (d + 1, d + 1))
    else:
        a.e("s_mov_b32 s%d, s%d" % (d, lo))
        a.e("s_and_b32 s%d, s%d, 0xffff" % (d + 1, hi))
    a.e("s_mov_b32 s%d, 0x%x" % (d + 2, nbytes))
    a.e("s_mov_b32 s%d, 0x00020000" % (d + 3))


def make_srd_s(a, d, lo, hi, nbytes, soff):
    a.e("s_add_u32 s%d, s%d, s%d" % (d, lo, soff))
    a.e("s_addc_u32 s%d, s%d, 0" % (d + 1, hi))
    a.e("s_and_b32 s%d, s%d, 0xffff" % (d + 1, d + 1))
    a.e("s_mov_b32 s%d, 0x%x" % (d + 2, nbytes))
    a.e("s_mov_b32 s%d, 0x00020000" % (d + 3))


def kernel_header(a, name):
    a.raw(".globl %s" % name)
    a.raw(".p2align 8")
    a.raw(".type %s,@function" % name)
    a.label(name)


def kernel_desc(name, vgpr, sgpr=102):
    acc = (vgpr + 3) // 4 * 4
    return """.amdhsa_kernel %s
  .amdhsa_next_free_vgpr %d
  .amdhsa_next_free_sgpr %d
  .amdhsa_accum_offset %d
  .amdhsa_group_segment_fixed_size 0
  .amdhsa_kernarg_size 96
  .amdhsa_user_sgpr_count 2
  .amdhsa_user_sgpr_kernarg_segment_ptr 1
  .amdhsa_system_sgpr_workgroup_id_x 1
.end_amdhsa_kernel""" % (name, vgpr, sgpr, acc)


def round_bf16_pair(a, d0, d1, s0, s1, tmp):
    a.e("v_cvt_pk_bf16_f32 v%d, v%d, v%d" % (tmp, s0, s1))
    a.e("v_lshlrev_b32 v%d, 16, v%d" % (d0, tmp))
    a.e("v_and_b32 v%d, 0xffff0000, v%d" % (d1, tmp))


def tr_lane_off(a, dst, vL, t0, t1):
    a.e("v_and_b32 v%d, 16, v%d" % (dst, vL))
    a.e("v_lshlrev_b32 v%d, 1, v%d" % (dst, dst))
    a.e("v_and_b32 v%d, 1, v%d" % (t0, vL))
    a.e("v_lshlrev_b32 v%d, 4, v%d" % (t0, t0))
    a.e("v_and_b32 v%d, 2, v%d" % (t1, vL))
    a.e("v_lshlrev_b32 v%d, 2, v%d" % (t1, t1))
    a.e("v_add3_u32 v%d, v%d, v%d, v%d" % (dst, dst, t0, t1))


def gen_ffn1(a):
    name = "ffn1_kernel"
    kernel_header(a, name)
    NWG = 8 * 28
    sX, sWG, sWU, sWS = 4, 6, 8, 10
    rX, rWG, rWU, rXN, rH = 12, 16, 20, 24, 28
    sRB, sCB, sW, sT0, sT1, sT2 = 32, 33, 34, 35, 36, 37
    sK1, sK2 = 38, 39
    a.e("s_cmp_ge_u32 s2, %d" % NWG)
    a.e("s_cbranch_scc1 L_ffn1_end")
    a.e("s_load_dwordx2 s[%d:%d], s[0:1], 0" % (sX, sX + 1))
    a.e("s_load_dwordx2 s[%d:%d], s[0:1], 48" % (sWG, sWG + 1))
    a.e("s_load_dwordx2 s[%d:%d], s[0:1], 56" % (sWU, sWU + 1))
    a.e("s_load_dwordx2 s[%d:%d], s[0:1], 88" % (sWS, sWS + 1))
    X = 0
    ACC = 128
    FR = 192
    vLane, vT0, vT1, vT2, vT3, vT4 = 232, 233, 234, 235, 236, 237
    vA = 238
    vXo, vDW, vSum, vSq, vMean, vRinv = 242, 243, 244, 245, 246, 247
    vHo = 248
    a.e("v_and_b32 v%d, 63, v0" % vLane)
    a.e("v_lshrrev_b32 v%d, 6, v0" % vT0)
    a.e("s_and_b32 s%d, s2, 7" % sRB)
    a.e("s_lshr_b32 s%d, s2, 3" % sCB)
    a.e("v_readfirstlane_b32 s%d, v%d" % (sW, vT0))
    a.e("s_waitcnt lgkmcnt(0)")
    make_srd(a, rX, sX, sX + 1, S * D * 2)
    make_srd(a, rWG, sWG, sWG + 1, D * DF * 2)
    make_srd(a, rWU, sWU, sWU + 1, D * DF * 2)
    make_srd(a, rXN, sWS, sWS + 1, XN_BYTES, WS_XN) if WS_XN else make_srd(a, rXN, sWS, sWS + 1, XN_BYTES)
    make_srd(a, rH, sWS, sWS + 1, H_BYTES, WS_H)
    a.e("v_lshrrev_b32 v%d, 3, v%d" % (vT0, vLane))
    a.e("s_movk_i32 s%d, 3584" % sT0)
    a.e("v_mul_lo_u32 v%d, v%d, s%d" % (vT0, vT0, sT0))
    a.e("v_lshrrev_b32 v%d, 2, v%d" % (vT1, vLane))
    a.e("v_and_b32 v%d, 4, v%d" % (vT1, vT1))
    a.e("v_and_b32 v%d, 7, v%d" % (vT2, vLane))
    a.e("v_xor_b32 v%d, v%d, v%d" % (vT1, vT1, vT2))
    a.e("v_lshl_add_u32 v%d, v%d, 4, v%d" % (vDW, vT1, vT0))
    a.e("s_mul_i32 s%d, s%d, %d" % (sT0, sW, 64 * 3584))
    a.e("s_lshl_b32 s%d, s%d, 7" % (sT1, sCB))
    a.e("s_add_u32 s%d, s%d, s%d" % (sT0, sT0, sT1))
    a.e("s_lshl_b32 s%d, s%d, 13" % (sT1, sW))
    for i in range(8):
        a.e("s_add_u32 m0, s%d, %d" % (sT1, i * 1024))
        a.e("s_nop 0")
        a.e("buffer_load_dwordx4 v%d, s[%d:%d], s%d offen lds" % (vDW, rWG, rWG + 3, sT0))
        a.e("s_add_u32 m0, s%d, %d" % (sT1, 65536 + i * 1024))
        a.e("s_nop 0")
        a.e("buffer_load_dwordx4 v%d, s[%d:%d], s%d offen lds" % (vDW, rWU, rWU + 3, sT0))
        if i < 7:
            a.e("s_add_u32 s%d, s%d, %d" % (sT0, sT0, 8 * 3584))
    a.e("s_lshl_b32 s%d, s%d, 8" % (sT1, sRB))
    a.e("s_lshl_b32 s%d, s%d, 5" % (sT2, sW))
    a.e("s_add_u32 s%d, s%d, s%d" % (sT1, sT1, sT2))
    a.e("v_and_b32 v%d, 31, v%d" % (vT0, vLane))
    a.e("v_add_u32 v%d, s%d, v%d" % (vT0, sT1, vT0))
    a.e("v_lshrrev_b32 v%d, 5, v%d" % (vT1, vLane))
    a.e("v_lshlrev_b32 v%d, 4, v%d" % (vT1, vT1))
    a.e("v_lshl_add_u32 v%d, v%d, 10, v%d" % (vXo, vT0, vT1))
    a.e("s_movk_i32 s%d, 3584" % sT2)
    a.e("v_mul_lo_u32 v%d, v%d, s%d" % (vHo, vT0, sT2))
    a.e("v_add_u32 v%d, v%d, v%d" % (vHo, vHo, vT1))
    a.e("s_lshl_b32 s%d, s%d, 7" % (sT2, sCB))
    a.e("v_add_u32 v%d, s%d, v%d" % (vHo, sT2, vHo))
    for ks in range(32):
        a.e("buffer_load_dwordx4 %s, v%d, s[%d:%d], 0 offen offset:%d" % (vr(X + 4 * ks, 4), vXo, rX, rX + 3, ks * 32))
    tr_lane_off(a, vT2, vLane, vT0, vT1)
    a.e("v_lshrrev_b32 v%d, 5, v%d" % (vT0, vLane))
    a.e("v_lshlrev_b32 v%d, 3, v%d" % (vT0, vT0))
    a.e("v_bfe_u32 v%d, v%d, 2, 2" % (vT1, vLane))
    a.e("v_add_u32 v%d, v%d, v%d" % (vT0, vT0, vT1))
    a.e("v_lshl_add_u32 v%d, v%d, 7, v%d" % (vT2, vT0, vT2))
    a.e("v_lshrrev_b32 v%d, 1, v%d" % (vT1, vT1))
    a.e("v_lshlrev_b32 v%d, 6, v%d" % (vT1, vT1))
    a.e("v_add_u32 v%d, v%d, v%d" % (vA + 0, vT2, vT1))
    a.e("v_xor_b32 v%d, 64, v%d" % (vT1, vT1))
    a.e("v_add_u32 v%d, v%d, v%d" % (vA + 1, vT2, vT1))
    a.e("v_add_u32 v%d, 0x10000, v%d" % (vA + 2, vA + 0))
    a.e("v_add_u32 v%d, 0x10000, v%d" % (vA + 3, vA + 1))
    a.e("s_waitcnt vmcnt(0)")
    a.e("v_mov_b32 v%d, 0x3f803f80" % vT4)
    a.e("v_mov_b32 v%d, 0" % vSum)
    a.e("v_mov_b32 v%d, 0" % vT3)
    for i in range(128):
        a.e("v_dot2_f32_bf16 v%d, v%d, v%d, v%d" % (vSum if i % 2 == 0 else vT3, X + i, vT4, vSum if i % 2 == 0 else vT3))
    a.e("s_nop 3")
    a.e("v_add_f32 v%d, v%d, v%d" % (vSum, vSum, vT3))
    a.e("v_mov_b32 v%d, v%d" % (vT0, vSum))
    a.e("s_nop 1")
    a.e("v_permlane32_swap_b32 v%d, v%d" % (vSum, vT0))
    a.e("s_nop 1")
    a.e("v_add_f32 v%d, v%d, v%d" % (vSum, vSum, vT0))
    a.e("v_mul_f32 v%d, %s, v%d" % (vMean, f32(1.0 / D), vSum))
    a.e("v_mov_b32 v%d, 0" % vSq)
    a.e("v_mov_b32 v%d, 0" % vT3)
    for i in range(128):
        a.e("v_lshlrev_b32 v%d, 16, v%d" % (vT0, X + i))
        a.e("v_and_b32 v%d, 0xffff0000, v%d" % (vT1, X + i))
        a.e("v_sub_f32 v%d, v%d, v%d" % (vT0, vT0, vMean))
        a.e("v_sub_f32 v%d, v%d, v%d" % (vT1, vT1, vMean))
        a.e("v_fmac_f32 v%d, v%d, v%d" % (vSq, vT0, vT0))
        a.e("v_fmac_f32 v%d, v%d, v%d" % (vT3, vT1, vT1))
    a.e("v_add_f32 v%d, v%d, v%d" % (vSq, vSq, vT3))
    a.e("v_mov_b32 v%d, v%d" % (vT0, vSq))
    a.e("s_nop 1")
    a.e("v_permlane32_swap_b32 v%d, v%d" % (vSq, vT0))
    a.e("s_nop 1")
    a.e("v_add_f32 v%d, v%d, v%d" % (vSq, vSq, vT0))
    a.e("v_mul_f32 v%d, %s, v%d" % (vSq, f32(1.0 / D), vSq))
    round_bf16_pair(a, vMean, vSq, vMean, vSq, vT0)
    a.e("v_add_f32 v%d, %s, v%d" % (vSq, f32(1e-5), vSq))
    round_bf16_pair(a, vSq, vT1, vSq, vSq, vT0)
    a.e("v_sqrt_f32 v%d, v%d" % (vSq, vSq))
    a.e("s_nop 0")
    round_bf16_pair(a, vSq, vT1, vSq, vSq, vT0)
    a.e("v_rcp_f32 v%d, v%d" % (vRinv, vSq))
    a.e("s_nop 0")
    a.e("v_mul_f32 v%d, v%d, v%d" % (vMean, vMean, vRinv))
    for i in range(128):
        a.e("v_lshlrev_b32 v%d, 16, v%d" % (vT0, X + i))
        a.e("v_and_b32 v%d, 0xffff0000, v%d" % (vT1, X + i))
        a.e("v_fma_f32 v%d, v%d, v%d, -v%d" % (vT0, vT0, vRinv, vMean))
        a.e("v_fma_f32 v%d, v%d, v%d, -v%d" % (vT1, vT1, vRinv, vMean))
        a.e("v_cvt_pk_bf16_f32 v%d, v%d, v%d" % (X + i, vT0, vT1))
    a.e("s_cmp_lg_u32 s%d, 0" % sCB)
    a.e("s_cbranch_scc1 L_ffn1_noxn")
    for ks in range(32):
        a.e("buffer_store_dwordx4 %s, v%d, s[%d:%d], 0 offen offset:%d" % (vr(X + 4 * ks, 4), vXo, rXN, rXN + 3, ks * 32))
    a.label("L_ffn1_noxn")
    a.e("s_waitcnt vmcnt(0)")
    a.e("s_barrier")
    NFR = 10
    seq = [(ks, q) for ks in range(32) for q in range(4)]
    PD = 6

    def frag(n):
        return FR + 4 * (n % NFR)

    def issue(n):
        ks, q = seq[n]
        for t in range(2):
            a.lds("ds_read_b64_tr_b16 %s, v%d offset:%d" % (vr(frag(n) + 2 * t, 2), vA + q, (16 * ks + 4 * t) * 128), n)

    for n in range(PD):
        issue(n)
    for n in range(len(seq)):
        if n + PD < len(seq):
            issue(n + PD)
        ks, q = seq[n]
        a.wait_lds(n)
        acc = ACC + 16 * q
        a.e("v_mfma_f32_32x32x16_bf16 %s, %s, %s, %s" % (vr(acc, 16), vr(frag(n), 4), vr(X + 4 * ks, 4), "0" if ks == 0 else vr(acc, 16)))
    a.e("s_nop 15")
    a.e("s_nop 3")
    KK = -2.0 * math.sqrt(2.0 / math.pi) * math.log2(math.e)
    a.e("s_mov_b32 s%d, %s" % (sK1, f32(KK * 0.044715)))
    a.e("v_mov_b32 v%d, %s" % (vT4, f32(KK)))
    for cs in range(2):
        G = ACC + 16 * cs
        U = ACC + 32 + 16 * cs
        for p in range(8):
            g0, g1, u0, u1 = G + 2 * p, G + 2 * p + 1, U + 2 * p, U + 2 * p + 1
            round_bf16_pair(a, g0, g1, g0, g1, vT0)
            round_bf16_pair(a, u0, u1, u0, u1, vT0)
            for g, t in ((g0, vT0), (g1, vT1)):
                a.e("v_mul_f32 v%d, v%d, v%d" % (t, g, g))
                a.e("v_fma_f32 v%d, v%d, s%d, v%d" % (t, t, sK1, vT4))
                a.e("v_mul_f32 v%d, v%d, v%d" % (t, t, g))
            a.e("v_exp_f32 v%d, v%d" % (vT0, vT0))
            a.e("v_exp_f32 v%d, v%d" % (vT1, vT1))
            a.e("s_nop 0")
            a.e("v_add_f32 v%d, 1.0, v%d" % (vT0, vT0))
            a.e("v_add_f32 v%d, 1.0, v%d" % (vT1, vT1))
            a.e("v_rcp_f32 v%d, v%d" % (vT0, vT0))
            a.e("v_rcp_f32 v%d, v%d" % (vT1, vT1))
            a.e("s_nop 0")
            a.e("v_mul_f32 v%d, v%d, v%d" % (g0, g0, vT0))
            a.e("v_mul_f32 v%d, v%d, v%d" % (g1, g1, vT1))
            round_bf16_pair(a, g0, g1, g0, g1, vT0)
            a.e("v_mul_f32 v%d, v%d, v%d" % (g0, g0, u0))
            a.e("v_mul_f32 v%d, v%d, v%d" % (g1, g1, u1))
            a.e("v_cvt_pk_bf16_f32 v%d, v%d, v%d" % (G + p, g0, g1))
        a.e("buffer_store_dwordx4 %s, v%d, s[%d:%d], 0 offen offset:%d" % (vr(G, 4), vHo, rH, rH + 3, cs * 64))
        a.e("buffer_store_dwordx4 %s, v%d, s[%d:%d], 0 offen offset:%d" % (vr(G + 4, 4), vHo, rH, rH + 3, cs * 64 + 32))
    a.label("L_ffn1_end")
    a.e("s_endpgm")
    return name, (NWG, 512, 131072), 256


def gen_attn(a):
    name = "attn_kernel"
    kernel_header(a, name)
    NWG = 256
    sK, sV, sWQ, sWS = 4, 6, 8, 10
    rK, rV, rWQ, rXN, rO = 12, 16, 20, 24, 28
    sHead, sQB, sW, sT0, sT1, sT2 = 32, 33, 34, 35, 36, 37
    sC, sJ, sKoff, sVoff, sM0K, sM0V = 38, 39, 40, 41, 42, 43
    a.e("s_cmp_ge_u32 s2, %d" % NWG)
    a.e("s_cbranch_scc1 L_attn_end")
    a.e("s_load_dwordx2 s[%d:%d], s[0:1], 8" % (sK, sK + 1))
    a.e("s_load_dwordx2 s[%d:%d], s[0:1], 16" % (sV, sV + 1))
    a.e("s_load_dwordx2 s[%d:%d], s[0:1], 24" % (sWQ, sWQ + 1))
    a.e("s_load_dwordx2 s[%d:%d], s[0:1], 88" % (sWS, sWS + 1))
    O = 0
    SB = [64, 96]
    Q = 128
    FR = 160
    NFR = 8
    X = 0
    QACC = 160
    PFR = 192
    vKa = 224
    vVa = 232
    vDK0, vDK1, vDV = 236, 237, 238
    vM, vM8, vL0, vL1 = 239, 240, 241, 242
    vT0, vT1, vT2, vT3, vT4 = 243, 244, 245, 246, 247
    vLane, vOo = 248, 249
    vWa = 250
    vDW = 254
    LDS_K = 131072
    LDS_V = 0
    a.e("v_and_b32 v%d, 63, v0" % vLane)
    a.e("v_lshrrev_b32 v%d, 6, v0" % vT0)
    a.e("s_lshr_b32 s%d, s2, 3" % sHead)
    a.e("s_and_b32 s%d, s2, 7" % sQB)
    a.e("v_readfirstlane_b32 s%d, v%d" % (sW, vT0))
    a.e("s_waitcnt lgkmcnt(0)")
    a.e("s_lshl_b32 s%d, s%d, 19" % (sT0, sHead))
    make_srd_s(a, rK, sK, sK + 1, S * DH * 2, sT0)
    make_srd_s(a, rV, sV, sV + 1, S * DH * 2, sT0)
    make_srd(a, rWQ, sWQ, sWQ + 1, D * H * DH * 2)
    make_srd(a, rXN, sWS, sWS + 1, XN_BYTES)
    make_srd(a, rO, sWS, sWS + 1, O_BYTES, WS_O)
    a.e("v_lshrrev_b32 v%d, 4, v%d" % (vT0, vLane))
    a.e("v_and_b32 v%d, 15, v%d" % (vT1, vLane))
    a.e("v_lshlrev_b32 v%d, 2, v%d" % (vT2, vT0))
    a.e("v_xor_b32 v%d, v%d, v%d" % (vT2, vT2, vT1))
    a.e("v_lshlrev_b32 v%d, 4, v%d" % (vT2, vT2))
    a.e("v_lshl_add_u32 v%d, v%d, 8, v%d" % (vDV, vT0, vT2))
    a.e("v_lshl_add_u32 v%d, v%d, 13, v%d" % (vDW, vT0, vT2))
    a.e("s_and_b32 s%d, s%d, 1" % (sT0, sW))
    a.e("s_lshl_b32 s%d, s%d, 3" % (sT0, sT0))
    a.e("v_add_u32 v%d, s%d, v%d" % (vT2, sT0, vT0))
    a.e("v_xor_b32 v%d, v%d, v%d" % (vT3, vT2, vT1))
    a.e("v_lshlrev_b32 v%d, 4, v%d" % (vT3, vT3))
    a.e("v_lshl_add_u32 v%d, v%d, 8, v%d" % (vDK0, vT0, vT3))
    a.e("v_add_u32 v%d, 4, v%d" % (vT2, vT2))
    a.e("v_xor_b32 v%d, v%d, v%d" % (vT3, vT2, vT1))
    a.e("v_lshlrev_b32 v%d, 4, v%d" % (vT3, vT3))
    a.e("v_lshl_add_u32 v%d, v%d, 8, v%d" % (vDK1, vT0, vT3))
    a.e("s_lshl_b32 s%d, s%d, 11" % (sT1, sW))
    a.e("s_add_u32 s%d, s%d, %d" % (sM0K, sT1, LDS_K))
    a.e("s_add_u32 s%d, s%d, %d" % (sM0V, sT1, LDS_V))

    def dma_k(slot, soff):
        a.e("s_add_u32 m0, s%d, %d" % (sM0K, slot * 16384))
        a.e("s_nop 0")
        a.e("buffer_load_dwordx4 v%d, s[%d:%d], s%d offen lds" % (vDK0, rK, rK + 3, soff))
        a.e("buffer_load_dwordx4 v%d, s[%d:%d], s%d offen offset:1024 lds" % (vDK1, rK, rK + 3, soff))

    def dma_v(slot, soff):
        a.e("s_add_u32 m0, s%d, %d" % (sM0V, slot * 16384))
        a.e("s_nop 0")
        a.e("buffer_load_dwordx4 v%d, s[%d:%d], s%d offen lds" % (vDV, rV, rV + 3, soff))
        a.e("buffer_load_dwordx4 v%d, s[%d:%d], s%d offen offset:1024 lds" % (vDV, rV, rV + 3, soff))

    a.e("s_lshl_b32 s%d, s%d, 19" % (sT0, sW))
    a.e("s_lshl_b32 s%d, s%d, 8" % (sT2, sHead))
    a.e("s_add_u32 s%d, s%d, s%d" % (sT0, sT0, sT2))
    a.e("s_lshl_b32 s%d, s%d, 14" % (sT2, sW))
    for i in range(16):
        a.e("s_add_u32 m0, s%d, %d" % (sT2, i * 1024))
        a.e("s_nop 0")
        a.e("buffer_load_dwordx4 v%d, s[%d:%d], s%d offen lds" % (vDW, rWQ, rWQ + 3, sT0))
        if i < 15:
            a.e("s_add_u32 s%d, s%d, %d" % (sT0, sT0, 4 * 8192))
    a.e("s_mov_b32 s%d, s%d" % (sKoff, sT1))
    dma_k(0, sKoff)
    a.e("s_add_u32 s%d, s%d, 16384" % (sKoff, sKoff))
    dma_k(1, sKoff)
    a.e("s_add_u32 s%d, s%d, 16384" % (sKoff, sKoff))
    a.e("s_mov_b32 s%d, s%d" % (sVoff, sT1))
    a.e("s_lshl_b32 s%d, s%d, 8" % (sT0, sQB))
    a.e("s_lshl_b32 s%d, s%d, 5" % (sT2, sW))
    a.e("s_add_u32 s%d, s%d, s%d" % (sT0, sT0, sT2))
    a.e("v_and_b32 v%d, 31, v%d" % (vT0, vLane))
    a.e("v_add_u32 v%d, s%d, v%d" % (vT0, sT0, vT0))
    a.e("v_lshrrev_b32 v%d, 5, v%d" % (vT1, vLane))
    a.e("v_lshlrev_b32 v%d, 4, v%d" % (vT1, vT1))
    a.e("v_lshl_add_u32 v%d, v%d, 10, v%d" % (vT2, vT0, vT1))
    for ks in range(32):
        a.e("buffer_load_dwordx4 %s, v%d, s[%d:%d], 0 offen offset:%d" % (vr(X + 4 * ks, 4), vT2, rXN, rXN + 3, ks * 32))
    a.e("v_lshl_add_u32 v%d, v%d, 13, v%d" % (vOo, vT0, vT1))
    a.e("s_lshl_b32 s%d, s%d, 8" % (sT2, sHead))
    a.e("v_add_u32 v%d, s%d, v%d" % (vOo, sT2, vOo))
    tr_lane_off(a, vT2, vLane, vT0, vT1)
    a.e("v_bfe_u32 v%d, v%d, 2, 2" % (vT1, vLane))
    a.e("v_lshrrev_b32 v%d, 5, v%d" % (vT0, vLane))
    a.e("v_lshl_add_u32 v%d, v%d, 3, v%d" % (vT3, vT0, vT1))
    a.e("v_lshl_add_u32 v%d, v%d, 8, v%d" % (vT3, vT3, vT2))
    a.e("v_lshl_add_u32 v%d, v%d, 2, v%d" % (vT4, vT0, vT1))
    a.e("v_lshl_add_u32 v%d, v%d, 8, v%d" % (vT4, vT4, vT2))
    for db in range(4):
        a.e("v_xor_b32 v%d, %d, v%d" % (vT2, db, vT1))
        a.e("v_lshlrev_b32 v%d, 6, v%d" % (vT2, vT2))
        a.e("v_add_u32 v%d, v%d, v%d" % (vWa + db, vT3, vT2))
        if LDS_V:
            a.e("v_add_u32 v%d, %d, v%d" % (vT2, LDS_V, vT2))
        a.e("v_add_u32 v%d, v%d, v%d" % (vVa + db, vT4, vT2))
    a.e("v_and_b32 v%d, 31, v%d" % (vT1, vLane))
    a.e("v_and_b32 v%d, 15, v%d" % (vT2, vLane))
    a.e("v_xor_b32 v%d, v%d, v%d" % (vT2, vT2, vT0))
    a.e("v_lshlrev_b32 v%d, 8, v%d" % (vT1, vT1))
    a.e("v_add_u32 v%d, 0x%x, v%d" % (vT1, LDS_K, vT1))
    for ks in range(8):
        a.e("v_xor_b32 v%d, %d, v%d" % (vT3, 2 * ks, vT2))
        a.e("v_lshl_add_u32 v%d, v%d, 4, v%d" % (vKa + ks, vT3, vT1))
    a.e("s_mov_b32 s%d, %s" % (sC, f32(math.log2(math.e) / math.sqrt(DH))))
    a.e("s_waitcnt vmcnt(0)")
    a.e("s_barrier")
    for ps in range(2):
        seq = [(ks, q) for ks in range(32) for q in range(2)]
        PD = 5
        NP = 8

        def pfrag(n):
            return PFR + 4 * (n % NP)

        def pissue(n):
            ks, q = seq[n]
            db = 2 * ps + q
            if n == 32 + 0 and False:
                pass
            for t in range(2):
                off = ((16 * ks + 4 * t) * 256) & 0xffff
                a.lds("ds_read_b64_tr_b16 %s, v%d offset:%d" % (vr(pfrag(n) + 2 * t, 2), vWa + db, off), n)

        for n in range(PD):
            pissue(n)
        for n in range(len(seq)):
            if n + PD < len(seq):
                if n + PD == 32:
                    for q in range(2):
                        a.e("v_add_u32 v%d, 0x10000, v%d" % (vWa + 2 * ps + q, vWa + 2 * ps + q))
                pissue(n + PD)
            ks, q = seq[n]
            a.wait_lds(n)
            acc = QACC + 16 * q
            a.e("v_mfma_f32_32x32x16_bf16 %s, %s, %s, %s" % (vr(acc, 16), vr(pfrag(n), 4), vr(X + 4 * ks, 4), "0" if ks == 0 else vr(acc, 16)))
        a.e("s_nop 15")
        a.e("s_nop 3")
        for q in range(2):
            db = 2 * ps + q
            for p in range(8):
                a.e("v_cvt_pk_bf16_f32 v%d, v%d, v%d" % (Q + 8 * db + p, QACC + 16 * q + 2 * p, QACC + 16 * q + 2 * p + 1))
    a.e("s_barrier")
    dma_v(0, sVoff)
    a.e("s_add_u32 s%d, s%d, 16384" % (sVoff, sVoff))
    dma_v(1, sVoff)
    a.e("s_add_u32 s%d, s%d, 16384" % (sVoff, sVoff))
    for i in range(64):
        a.e("v_mov_b32 v%d, 0" % (O + i))
    a.e("v_mov_b32 v%d, 0xff800000" % vM)
    a.e("v_mov_b32 v%d, 0xff800000" % vM8)
    a.e("v_mov_b32 v%d, 0" % vL0)
    a.e("v_mov_b32 v%d, 0" % vL1)

    fr_ctr = [0]

    def kread(kslot, m):
        kb, ks = m >> 3, m & 7
        f = FR + 4 * (fr_ctr[0] % NFR)
        tag = ("f", fr_ctr[0])
        fr_ctr[0] += 1
        a.lds("ds_read_b128 %s, v%d offset:%d" % (vr(f, 4), vKa + ks, kslot * 16384 + kb * 8192), tag)
        return (f, tag)

    def vread(vslot, m):
        s_, db = m >> 2, m & 3
        f = FR + 4 * (fr_ctr[0] % NFR)
        tag = ("f", fr_ctr[0])
        fr_ctr[0] += 1
        for t in range(2):
            a.lds("ds_read_b64_tr_b16 %s, v%d offset:%d" % (vr(f + 2 * t, 2), vVa + db, vslot * 16384 + (16 * s_ + 8 * t) * 256), tag)
        return (f, tag)

    def softmax_ops(cur):
        ops = []
        for g in range(8):
            b = cur + 4 * g
            for i in range(4):
                ops.append("v_fma_f32 v%d, v%d, s%d, -v%d" % (b + i, b + i, sC, vM))
            for i in range(4):
                ops.append("v_exp_f32 v%d, v%d" % (b + i, b + i))
            for i in range(4):
                l = vL0 if i % 2 == 0 else vL1
                ops.append("v_add_f32 v%d, v%d, v%d" % (l, l, b + i))
            ops.append("v_cvt_pk_bf16_f32 v%d, v%d, v%d" % (cur + 2 * g, b, b + 1))
            ops.append("v_cvt_pk_bf16_f32 v%d, v%d, v%d" % (cur + 2 * g + 1, b + 2, b + 3))
        return ops

    def max_ops(nxt):
        ops = []
        ops.append("v_max3_f32 v%d, v%d, v%d, v%d" % (vT0, nxt + 0, nxt + 1, nxt + 2))
        ops.append("v_max3_f32 v%d, v%d, v%d, v%d" % (vT1, nxt + 16, nxt + 17, nxt + 18))
        for i in range(3, 15, 2):
            ops.append("v_max3_f32 v%d, v%d, v%d, v%d" % (vT0, vT0, nxt + i, nxt + i + 1))
            ops.append("v_max3_f32 v%d, v%d, v%d, v%d" % (vT1, vT1, nxt + 16 + i, nxt + 16 + i + 1))
        ops.append("v_max3_f32 v%d, v%d, v%d, v%d" % (vT0, vT0, nxt + 15, nxt + 31))
        ops.append("v_max_f32 v%d, v%d, v%d" % (vT0, vT0, vT1))
        ops.append("v_mov_b32 v%d, v%d" % (vT1, vT0))
        ops.append("s_nop 1")
        ops.append("v_permlane32_swap_b32 v%d, v%d" % (vT0, vT1))
        ops.append("s_nop 1")
        ops.append("v_max_f32 v%d, v%d, v%d" % (vT0, vT0, vT1))
        ops.append("v_mul_f32 v%d, s%d, v%d" % (vT0, sC, vT0))
        return ops

    rescale_sites = []

    def rescale_check():
        n = a.nlabel
        a.nlabel += 1
        a.e("v_cmp_gt_f32 vcc, v%d, v%d" % (vT0, vM8))
        a.e("s_cbranch_vccnz L_resc_%d" % n)
        a.label("L_resc_ret_%d" % n)
        rescale_sites.append(n)

    PD = 4
    q = [kread(0, m) for m in range(PD)]
    for m in range(16):
        if m + PD < 16:
            q.append(kread(0, m + PD))
        f, tag = q[m]
        a.wait_lds(tag)
        kb, ks = m >> 3, m & 7
        acc = SB[0] + 16 * kb
        a.e("v_mfma_f32_32x32x16_bf16 %s, %s, %s, %s" % (vr(acc, 16), vr(f, 4), vr(Q + 4 * ks, 4), "0" if ks == 0 else vr(acc, 16)))
    a.e("s_nop 15")
    a.e("s_nop 3")
    for op in max_ops(SB[0]):
        a.e(op)
    rescale_check()
    a.e("s_waitcnt vmcnt(0)")
    a.e("s_barrier")
    dma_k(0, sKoff)
    a.e("s_add_u32 s%d, s%d, 16384" % (sKoff, sKoff))
    carry = [kread(1, m) for m in range(PD)]
    a.e("s_mov_b32 s%d, 0" % sJ)
    a.label("L_attn_loop")
    UNR = 4
    for u in range(UNR):
        cur, nxt = SB[u & 1], SB[(u + 1) & 1]
        kslot = (u + 1) & 1
        vslot = u & 3
        sm = softmax_ops(cur)
        mx = max_ops(nxt)
        fill = [[] for _ in range(32)]
        n1 = 84
        for i in range(n1):
            fill[i * 16 // n1].append(sm[i])
        for i in range(28):
            fill[16 + i * 6 // 28].append(sm[n1 + i])
        for i, op in enumerate(mx):
            fill[22 + i * 10 // len(mx)].append(op)
        frags = list(carry)
        carry = []
        for m in range(32):
            mm = m + PD
            if mm < 16:
                frags.append(kread(kslot, mm))
            elif mm < 32:
                frags.append(vread(vslot, mm - 16))
            else:
                carry.append(kread(kslot ^ 1, mm - 32))
            f, tag = frags[m]
            a.wait_lds(tag)
            if m < 16:
                kb, ks = m >> 3, m & 7
                acc = nxt + 16 * kb
                a.e("v_mfma_f32_32x32x16_bf16 %s, %s, %s, %s" % (vr(acc, 16), vr(f, 4), vr(Q + 4 * ks, 4), "0" if ks == 0 else vr(acc, 16)))
            else:
                s_, db = (m - 16) >> 2, (m - 16) & 3
                acc = O + 16 * db
                a.e("v_mfma_f32_32x32x16_bf16 %s, %s, %s, %s" % (vr(acc, 16), vr(f, 4), vr(cur + 4 * s_, 4), vr(acc, 16)))
            for op in fill[m]:
                a.e(op)
            if m == 32 - PD - 1:
                a.e("s_waitcnt vmcnt(0)")
                a.e("s_barrier")
                dma_k(kslot, sKoff)
                a.e("s_add_u32 s%d, s%d, 16384" % (sKoff, sKoff))
                dma_v((u + 2) & 3, sVoff)
                a.e("s_add_u32 s%d, s%d, 16384" % (sVoff, sVoff))
        if u == UNR - 1:
            a.e("s_cmp_eq_u32 s%d, %d" % (sJ, 32 - UNR))
            a.e("s_cbranch_scc1 L_attn_done")
        rescale_check()
    a.e("s_add_u32 s%d, s%d, %d" % (sJ, sJ, UNR))
    a.e("s_branch L_attn_loop")
    a.label("L_attn_done")
    a.wait_lds_all()
    a.e("s_nop 15")
    a.e("s_nop 3")
    a.e("v_add_f32 v%d, v%d, v%d" % (vL0, vL0, vL1))
    a.e("v_mov_b32 v%d, v%d" % (vT1, vL0))
    a.e("s_nop 1")
    a.e("v_permlane32_swap_b32 v%d, v%d" % (vL0, vT1))
    a.e("s_nop 1")
    a.e("v_add_f32 v%d, v%d, v%d" % (vL0, vL0, vT1))
    a.e("v_rcp_f32 v%d, v%d" % (vL0, vL0))
    a.e("s_nop 0")
    for db in range(4):
        for i in range(16):
            a.e("v_mul_f32 v%d, v%d, v%d" % (O + 16 * db + i, O + 16 * db + i, vL0))
        for p in range(8):
            a.e("v_cvt_pk_bf16_f32 v%d, v%d, v%d" % (O + 16 * db + p, O + 16 * db + 2 * p, O + 16 * db + 2 * p + 1))
        a.e("buffer_store_dwordx4 %s, v%d, s[%d:%d], 0 offen offset:%d" % (vr(O + 16 * db, 4), vOo, rO, rO + 3, db * 64))
        a.e("buffer_store_dwordx4 %s, v%d, s[%d:%d], 0 offen offset:%d" % (vr(O + 16 * db + 4, 4), vOo, rO, rO + 3, db * 64 + 32))
    a.e("s_branch L_attn_end")
    for n in rescale_sites:
        a.label("L_resc_%d" % n)
        a.e("s_nop 15")
        a.e("s_nop 3")
        a.e("v_max_f32 v%d, v%d, v%d" % (vT1, vT0, vM))
        a.e("v_sub_f32 v%d, v%d, v%d" % (vT2, vM, vT1))
        a.e("v_exp_f32 v%d, v%d" % (vT2, vT2))
        a.e("v_mov_b32 v%d, v%d" % (vM, vT1))
        a.e("v_add_f32 v%d, 8.0, v%d" % (vM8, vT1)) if False else a.e("v_add_f32 v%d, 0x41000000, v%d" % (vM8, vT1))
        for i in range(64):
            a.e("v_mul_f32 v%d, v%d, v%d" % (O + i, O + i, vT2))
        a.e("v_mul_f32 v%d, v%d, v%d" % (vL0, vL0, vT2))
        a.e("v_mul_f32 v%d, v%d, v%d" % (vL1, vL1, vT2))
        a.e("s_nop 1")
        a.e("s_branch L_resc_ret_%d" % n)
    a.label("L_attn_end")
    a.e("s_endpgm")
    return name, (NWG, 512, 163840), 256


def gen_out(a):
    name = "outp_kernel"
    kernel_header(a, name)
    NWG = 256
    sX, sWO, sWD, sOut, sWS = 4, 6, 8, 10, 12
    rX, rWO, rWD, rOut, rOW, rHW = 16, 20, 24, 28, 32, 36
    sTB, sNB, sW, sT0, sT1, sT2 = 40, 41, 42, 43, 44, 45
    sA, sB, sLB, sCnt = 46, 47, 48, 49
    a.e("s_cmp_ge_u32 s2, %d" % NWG)
    a.e("s_cbranch_scc1 L_outp_end")
    a.e("s_load_dwordx2 s[%d:%d], s[0:1], 0" % (sX, sX + 1))
    a.e("s_load_dwordx2 s[%d:%d], s[0:1], 32" % (sWO, sWO + 1))
    a.e("s_load_dwordx2 s[%d:%d], s[0:1], 64" % (sWD, sWD + 1))
    a.e("s_load_dwordx2 s[%d:%d], s[0:1], 72" % (sOut, sOut + 1))
    a.e("s_load_dwordx2 s[%d:%d], s[0:1], 88" % (sWS, sWS + 1))
    ACC = [0, 64]
    FA = 128
    FB = 144
    vLane, vT0, vT1, vT2, vT3, vT4 = 160, 161, 162, 163, 164, 165
    vBa = 166
    vAa = 170
    vDAe = [172, 174]
    vDAo = [173, 175]
    vDW = 176
    vXo = 177
    vR = 178
    XR = 180
    a.e("v_and_b32 v%d, 63, v0" % vLane)
    a.e("v_lshrrev_b32 v%d, 6, v0" % vT0)
    a.e("s_lshr_b32 s%d, s2, 3" % sTB)
    a.e("s_and_b32 s%d, s2, 7" % sNB)
    a.e("v_readfirstlane_b32 s%d, v%d" % (sW, vT0))
    a.e("s_waitcnt lgkmcnt(0)")
    make_srd(a, rX, sX, sX + 1, S * D * 2)
    make_srd(a, rWO, sWO, sWO + 1, H * DH * D * 2)
    make_srd(a, rWD, sWD, sWD + 1, DF * D * 2)
    make_srd(a, rOut, sOut, sOut + 1, S * D * 2)
    make_srd(a, rOW, sWS, sWS + 1, O_BYTES, WS_O)
    make_srd(a, rHW, sWS, sWS + 1, H_BYTES, WS_H)
    a.e("s_lshl_b32 s%d, s%d, 15" % (sLB, sW))
    a.e("v_lshrrev_b32 v%d, 3, v%d" % (vT0, vLane))
    a.e("v_and_b32 v%d, 7, v%d" % (vT1, vLane))
    a.e("v_lshrrev_b32 v%d, 4, v%d" % (vT2, vLane))
    a.e("v_xor_b32 v%d, v%d, v%d" % (vT3, vT1, vT2))
    a.e("v_lshlrev_b32 v%d, 4, v%d" % (vT3, vT3))
    a.e("v_xor_b32 v%d, 64, v%d" % (vT4, vT3))
    for mi, stride in enumerate((8192, 3584)):
        a.e("s_movk_i32 s%d, %d" % (sT0, stride))
        a.e("v_mul_lo_u32 v%d, v%d, s%d" % (vDAe[mi], vT0, sT0))
        a.e("v_add_u32 v%d, v%d, v%d" % (vDAo[mi], vDAe[mi], vT4))
        a.e("v_add_u32 v%d, v%d, v%d" % (vDAe[mi], vDAe[mi], vT3))
    a.e("v_and_b32 v%d, 1, v%d" % (vT2, vT2))
    a.e("v_lshlrev_b32 v%d, 2, v%d" % (vT2, vT2))
    a.e("v_xor_b32 v%d, v%d, v%d" % (vT2, vT2, vT1))
    a.e("v_lshlrev_b32 v%d, 4, v%d" % (vT2, vT2))
    a.e("v_lshl_add_u32 v%d, v%d, 10, v%d" % (vDW, vT0, vT2))
    a.e("v_and_b32 v%d, 31, v%d" % (vT0, vLane))
    a.e("v_bfe_u32 v%d, v%d, 1, 3" % (vT1, vLane))
    a.e("v_lshrrev_b32 v%d, 5, v%d" % (vT2, vLane))
    a.e("v_xor_b32 v%d, v%d, v%d" % (vT1, vT1, vT2))
    a.e("v_lshlrev_b32 v%d, 7, v%d" % (vT0, vT0))
    a.e("v_add_u32 v%d, s%d, v%d" % (vT0, sLB, vT0))
    for ks in range(4):
        a.e("v_xor_b32 v%d, %d, v%d" % (vT3, 2 * ks, vT1))
        a.e("v_lshl_add_u32 v%d, v%d, 4, v%d" % (vBa + ks, vT3, vT0))
    tr_lane_off(a, vT3, vLane, vT0, vT1)
    a.e("v_bfe_u32 v%d, v%d, 2, 2" % (vT1, vLane))
    a.e("v_lshl_add_u32 v%d, v%d, 3, v%d" % (vT0, vT2, vT1))
    a.e("v_lshl_add_u32 v%d, v%d, 7, v%d" % (vT3, vT0, vT3))
    a.e("v_add_u32 v%d, 0x2000, v%d" % (vT3, vT3))
    a.e("v_add_u32 v%d, s%d, v%d" % (vT3, sLB, vT3))
    a.e("v_lshrrev_b32 v%d, 1, v%d" % (vT1, vT1))
    a.e("v_lshlrev_b32 v%d, 6, v%d" % (vT1, vT1))
    a.e("v_add_u32 v%d, v%d, v%d" % (vAa + 0, vT3, vT1))
    a.e("v_xor_b32 v%d, 64, v%d" % (vT1, vT1))
    a.e("v_add_u32 v%d, v%d, v%d" % (vAa + 1, vT3, vT1))

    def dma_chunk(mi, stage):
        stride = (8192, 3584)[mi]
        rAct = (rOW, rHW)[mi]
        rWt = (rWO, rWD)[mi]
        a.e("s_mov_b32 s%d, s%d" % (sT0, sA))
        a.e("s_mov_b32 s%d, s%d" % (sT1, sB))
        for i in range(8):
            a.e("s_add_u32 m0, s%d, %d" % (sLB, stage * 16384 + i * 1024))
            a.e("s_nop 0")
            a.e("buffer_load_dwordx4 v%d, s[%d:%d], s%d offen lds" % ((vDAe if i % 2 == 0 else vDAo)[mi], rAct, rAct + 3, sT0))
            a.e("s_add_u32 m0, s%d, %d" % (sLB, stage * 16384 + 8192 + i * 1024))
            a.e("s_nop 0")
            a.e("buffer_load_dwordx4 v%d, s[%d:%d], s%d offen lds" % (vDW, rWt, rWt + 3, sT1))
            if i < 7:
                a.e("s_add_u32 s%d, s%d, %d" % (sT0, sT0, 8 * stride))
                a.e("s_add_u32 s%d, s%d, %d" % (sT1, sT1, 8 * 1024))
        a.e("s_add_u32 s%d, s%d, %d" % (sA, sA, 4 * 128))
        a.e("s_add_u32 s%d, s%d, %d" % (sB, sB, 4 * 64 * 1024))

    def compute_chunk(acc, stage, first):
        def rd(ks):
            b = ks & 1
            for nb in range(2):
                for t in range(2):
                    a.lds("ds_read_b64_tr_b16 %s, v%d offset:%d" % (vr(FA + 8 * b + 4 * nb + 2 * t, 2), vAa + nb, stage * 16384 + (16 * ks + 4 * t) * 128), ("c", ks))
            for tb in range(2):
                a.lds("ds_read_b128 %s, v%d offset:%d" % (vr(FB + 8 * b + 4 * tb, 4), vBa + ks, stage * 16384 + tb * 4096), ("c", ks))
        rd(0)
        for ks in range(4):
            if ks < 3:
                rd(ks + 1)
            a.wait_lds(("c", ks))
            b = ks & 1
            for nb in range(2):
                for tb in range(2):
                    d = acc + 16 * (nb * 2 + tb)
                    a.e("v_mfma_f32_32x32x16_bf16 %s, %s, %s, %s" % (vr(d, 16), vr(FA + 8 * b + 4 * nb, 4), vr(FB + 8 * b + 4 * tb, 4), "0" if (first and ks == 0) else vr(d, 16)))

    for mi, nchunk in ((0, 16), (1, 7)):
        stride = (8192, 3584)[mi]
        a.e("s_mul_i32 s%d, s%d, %d" % (sA, sTB, 64 * stride))
        a.e("s_lshl_b32 s%d, s%d, 7" % (sT0, sW))
        a.e("s_add_u32 s%d, s%d, s%d" % (sA, sA, sT0))
        a.e("s_lshl_b32 s%d, s%d, 16" % (sB, sW))
        a.e("s_lshl_b32 s%d, s%d, 7" % (sT0, sNB))
        a.e("s_add_u32 s%d, s%d, s%d" % (sB, sB, sT0))
        acc = ACC[mi]
        dma_chunk(mi, 0)
        dma_chunk(mi, 1)
        a.e("s_waitcnt vmcnt(16)")
        compute_chunk(acc, 0, True)
        rem = nchunk - 1
        npair = (rem - 1) // 2 if (rem - 1) >= 2 else 0
        lab = "L_outp_loop%d" % mi
        if npair > 0:
            a.e("s_mov_b32 s%d, %d" % (sCnt, npair))
            a.label(lab)
            dma_chunk(mi, 0)
            a.e("s_waitcnt vmcnt(16)")
            compute_chunk(acc, 1, False)
            dma_chunk(mi, 1)
            a.e("s_waitcnt vmcnt(16)")
            compute_chunk(acc, 0, False)
            a.e("s_sub_u32 s%d, s%d, 1" % (sCnt, sCnt))
            a.e("s_cmp_lg_u32 s%d, 0" % sCnt)
            a.e("s_cbranch_scc1 %s" % lab)
        done = 1 + 2 * npair
        left = nchunk - done
        if left == 2:
            dma_chunk(mi, 0)
            a.e("s_waitcnt vmcnt(16)")
            compute_chunk(acc, 1, False)
            a.e("s_waitcnt vmcnt(0)")
            compute_chunk(acc, 0, False)
        elif left == 1:
            a.e("s_waitcnt vmcnt(0)")
            compute_chunk(acc, 1, False)
        else:
            raise Exception("bad chunk schedule %d" % left)
    a.e("s_nop 15")
    a.e("s_nop 3")
    a.e("s_and_b32 s%d, s%d, 1" % (sT0, sW))
    a.e("s_lshl_b32 s%d, s%d, 5" % (sT0, sT0))
    a.e("s_lshl_b32 s%d, s%d, 6" % (sT1, sTB))
    a.e("s_add_u32 s%d, s%d, s%d" % (sT0, sT0, sT1))
    a.e("v_and_b32 v%d, 31, v%d" % (vT0, vLane))
    a.e("v_add_u32 v%d, s%d, v%d" % (vT0, sT0, vT0))
    a.e("v_lshrrev_b32 v%d, 5, v%d" % (vT1, vLane))
    a.e("v_lshlrev_b32 v%d, 4, v%d" % (vT1, vT1))
    a.e("v_lshl_add_u32 v%d, v%d, 10, v%d" % (vXo, vT0, vT1))
    a.e("s_lshr_b32 s%d, s%d, 1" % (sT0, sW))
    a.e("s_lshl_b32 s%d, s%d, 6" % (sT0, sT0))
    a.e("s_lshl_b32 s%d, s%d, 7" % (sT1, sNB))
    a.e("s_add_u32 s%d, s%d, s%d" % (sT0, sT0, sT1))
    a.e("v_add_u32 v%d, s%d, v%d" % (vXo, sT0, vXo))
    a.e("buffer_load_dwordx4 %s, v%d, s[%d:%d], 0 offen" % (vr(XR, 4), vXo, rX, rX + 3))
    a.e("buffer_load_dwordx4 %s, v%d, s[%d:%d], 0 offen offset:32" % (vr(XR + 4, 4), vXo, rX, rX + 3))
    a.e("s_barrier")
    a.e("v_lshlrev_b32 v%d, 4, v%d" % (vR, vLane))
    a.e("v_add_u32 v%d, s%d, v%d" % (vT0, sLB, vR))
    for i in range(32):
        a.e("ds_write_b128 v%d, %s offset:%d" % (vT0, vr(4 * i, 4), i * 1024))
    a.e("s_waitcnt lgkmcnt(0)")
    a.e("s_barrier")
    a.e("s_lshl_b32 s%d, s%d, 12" % (sT0, sW))
    a.e("v_add_u32 v%d, s%d, v%d" % (vR, sT0, vR))
    a.e("v_add_u32 v%d, 0x10000, v%d" % (vT4, vR))
    for part, base in ((0, 0), (1, 64)):
        for src in range(4):
            for i in range(4):
                a.e("ds_read_b128 %s, v%d offset:%d" % (vr(base + 16 * src + 4 * i, 4), vR if src < 2 else vT4, (src & 1) * 32768 + part * 16384 + i * 1024))
        a.e("s_waitcnt lgkmcnt(0)")
        for i in range(16):
            a.e("v_add_f32 v%d, v%d, v%d" % (base + i, base + i, base + 16 + i))
            a.e("v_add_f32 v%d, v%d, v%d" % (base + 32 + i, base + 32 + i, base + 48 + i))
        for i in range(16):
            a.e("v_add_f32 v%d, v%d, v%d" % (base + i, base + i, base + 32 + i))
    a.e("s_waitcnt vmcnt(0)")
    a.e("s_mov_b32 s%d, %s" % (sT2, f32(-math.log2(math.e))))
    for p in range(8):
        s0, s1, f0, f1 = 2 * p, 2 * p + 1, 64 + 2 * p, 64 + 2 * p + 1
        round_bf16_pair(a, s0, s1, s0, s1, vT0)
        round_bf16_pair(a, f0, f1, f0, f1, vT0)
        a.e("v_mul_f32 v%d, s%d, v%d" % (vT0, sT2, f0))
        a.e("v_mul_f32 v%d, s%d, v%d" % (vT1, sT2, f1))
        a.e("v_exp_f32 v%d, v%d" % (vT0, vT0))
        a.e("v_exp_f32 v%d, v%d" % (vT1, vT1))
        a.e("s_nop 0")
        a.e("v_add_f32 v%d, 1.0, v%d" % (vT0, vT0))
        a.e("v_add_f32 v%d, 1.0, v%d" % (vT1, vT1))
        a.e("v_rcp_f32 v%d, v%d" % (vT0, vT0))
        a.e("v_rcp_f32 v%d, v%d" % (vT1, vT1))
        a.e("s_nop 0")
        a.e("v_mul_f32 v%d, v%d, v%d" % (f0, f0, vT0))
        a.e("v_mul_f32 v%d, v%d, v%d" % (f1, f1, vT1))
        round_bf16_pair(a, f0, f1, f0, f1, vT0)
        a.e("v_mul_f32 v%d, v%d, v%d" % (s0, s0, f0))
        a.e("v_mul_f32 v%d, v%d, v%d" % (s1, s1, f1))
        round_bf16_pair(a, s0, s1, s0, s1, vT0)
        a.e("v_lshlrev_b32 v%d, 16, v%d" % (vT0, XR + p))
        a.e("v_and_b32 v%d, 0xffff0000, v%d" % (vT1, XR + p))
        a.e("v_add_f32 v%d, v%d, v%d" % (s0, s0, vT0))
        a.e("v_add_f32 v%d, v%d, v%d" % (s1, s1, vT1))
        a.e("v_cvt_pk_bf16_f32 v%d, v%d, v%d" % (XR + p, s0, s1))
    a.e("buffer_store_dwordx4 %s, v%d, s[%d:%d], 0 offen" % (vr(XR, 4), vXo, rOut, rOut + 3))
    a.e("buffer_store_dwordx4 %s, v%d, s[%d:%d], 0 offen offset:32" % (vr(XR + 4, 4), vXo, rOut, rOut + 3))
    a.label("L_outp_end")
    a.e("s_endpgm")
    return name, (NWG, 256, 131072), 192


def main():
    a = Asm()
    ks = []
    for g in (gen_ffn1, gen_attn, gen_out):
        a.pend = []
        ks.append(g(a))
    head = []
    for name, (nwg, blk, lds), _ in ks:
        head.append("; @launch kernel=%s grid=(%d,1,1) block=(%d,1,1) lds=%d" % (name, nwg, blk, lds))
    head.append('.amdgcn_target "amdgcn-amd-amdhsa--gfx950"')
    head.append(".text")
    tail = ['.section .rodata,"a"']
    for name, _, vg in ks:
        tail.append(".p2align 6")
        tail.append(kernel_desc(name, vg))
    open(OUT, "w").write("\n".join(head + a.lines + tail) + "\n")


if __name__ == "__main__":
    main()
```

```python
import math, struct, sys, os
P = lambda k, d: int(os.environ.get(k, d))

OUT = os.environ.get("GEN_OUT", "recurrent_scan__mha_block_cached__glu_gated_geglu__prompt.s")

S = 2048; D = 512; H = 32; DH = 128; DF = 1792
WS_XN = 0
WS_H = 0x200000
WS_O = 0x1000000
XN_BYTES = S * D * 2
H_BYTES = S * DF * 2
O_BYTES = S * H * DH * 2


def f32(x):
    return "0x%08x" % struct.unpack("<I", struct.pack("<f", x))[0]


class Asm:
    def __init__(self):
        self.lines = []
        self.pend = []
        self.nlabel = 0
        self.nolds = False

    def e(self, s):
        self.lines.append("    " + s)

    def c(self, s):
        self.lines.append("    ; " + s)

    def label(self, name):
        self.lines.append(name + ":")

    def raw(self, s):
        self.lines.append(s)

    def lds(self, text, tag):
        if P('X_NOLDS', 0) and self.nolds:
            return
        self.e(text)
        self.pend.append(tag)
        assert len(self.pend) <= 15, "too many outstanding lgkm ops"

    def wait_lds(self, tag):
        if tag not in self.pend:
            return
        idx = len(self.pend) - 1 - self.pend[::-1].index(tag)
        n = len(self.pend) - idx - 1
        self.e("s_waitcnt lgkmcnt(%d)" % n)
        self.pend = self.pend[idx + 1:]

    def wait_lds_all(self):
        if self.pend:
            self.e("s_waitcnt lgkmcnt(0)")
        self.pend = []


def vr(a, n):
    return "v[%d:%d]" % (a, a + n - 1)


def sr(a, n):
    return "s[%d:%d]" % (a, a + n - 1)


def make_srd(a, d, lo, hi, nbytes, add=0):
    if add:
        a.e("s_add_u32 s%d, s%d, 0x%x" % (d, lo, add))
        a.e("s_addc_u32 s%d, s%d, 0" % (d + 1, hi))
        a.e("s_and_b32 s%d, s%d, 0xffff" % (d + 1, d + 1))
    else:
        a.e("s_mov_b32 s%d, s%d" % (d, lo))
        a.e("s_and_b32 s%d, s%d, 0xffff" % (d + 1, hi))
    a.e("s_mov_b32 s%d, 0x%x" % (d + 2, nbytes))
    a.e("s_mov_b32 s%d, 0x00020000" % (d + 3))


def make_srd_s(a, d, lo, hi, nbytes, soff):
    a.e("s_add_u32 s%d, s%d, s%d" % (d, lo, soff))
    a.e("s_addc_u32 s%d, s%d, 0" % (d + 1, hi))
    a.e("s_and_b32 s%d, s%d, 0xffff" % (d + 1, d + 1))
    a.e("s_mov_b32 s%d, 0x%x" % (d + 2, nbytes))
    a.e("s_mov_b32 s%d, 0x00020000" % (d + 3))


def kernel_header(a, name):
    a.raw(".globl %s" % name)
    a.raw(".p2align 8")
    a.raw(".type %s,@function" % name)
    a.label(name)


def kernel_desc(name, vgpr, sgpr=102):
    acc = (vgpr + 3) // 4 * 4
    return """.amdhsa_kernel %s
  .amdhsa_next_free_vgpr %d
  .amdhsa_next_free_sgpr %d
  .amdhsa_accum_offset %d
  .amdhsa_group_segment_fixed_size 0
  .amdhsa_kernarg_size 96
  .amdhsa_user_sgpr_count 2
  .amdhsa_user_sgpr_kernarg_segment_ptr 1
  .amdhsa_system_sgpr_workgroup_id_x 1
.end_amdhsa_kernel""" % (name, vgpr, sgpr, acc)


def round_bf16_pair(a, d0, d1, s0, s1, tmp):
    a.e("v_cvt_pk_bf16_f32 v%d, v%d, v%d" % (tmp, s0, s1))
    a.e("v_lshlrev_b32 v%d, 16, v%d" % (d0, tmp))
    a.e("v_and_b32 v%d, 0xffff0000, v%d" % (d1, tmp))


def tr_lane_off(a, dst, vL, t0, t1):
    a.e("v_and_b32 v%d, 16, v%d" % (dst, vL))
    a.e("v_lshlrev_b32 v%d, 1, v%d" % (dst, dst))
    a.e("v_and_b32 v%d, 1, v%d" % (t0, vL))
    a.e("v_lshlrev_b32 v%d, 4, v%d" % (t0, t0))
    a.e("v_and_b32 v%d, 2, v%d" % (t1, vL))
    a.e("v_lshlrev_b32 v%d, 2, v%d" % (t1, t1))
    a.e("v_add3_u32 v%d, v%d, v%d, v%d" % (dst, dst, t0, t1))


def gen_ln(a):
    name = "lnorm_kernel"
    kernel_header(a, name)
    NWG = 512
    sX, sWS = 4, 6
    rX, rXN = 8, 12
    sT0, sT1, sW = 16, 17, 18
    a.e("s_cmp_ge_u32 s2, %d" % NWG)
    a.e("s_cbranch_scc1 L_ln_end")
    a.e("s_load_dwordx2 s[%d:%d], s[0:1], 0" % (sX, sX + 1))
    a.e("s_load_dwordx2 s[%d:%d], s[0:1], 88" % (sWS, sWS + 1))
    vLane, vT0, vT1, vOff, vSt, vSum, vMean, vR = 1, 2, 3, 4, 5, 6, 7, 8
    XP = 12
    XU = 16
    a.e("v_and_b32 v%d, 63, v0" % vLane)
    a.e("v_lshrrev_b32 v%d, 6, v0" % vT0)
    a.e("s_lshl_b32 s%d, s2, 2" % sT0)
    a.e("v_readfirstlane_b32 s%d, v%d" % (sW, vT0))
    a.e("s_waitcnt lgkmcnt(0)")
    make_srd(a, rX, sX, sX + 1, S * D * 2)
    make_srd(a, rXN, sWS, sWS + 1, XN_BYTES)
    a.e("s_add_u32 s%d, s%d, s%d" % (sT0, sT0, sW))
    a.e("s_lshl_b32 s%d, s%d, 10" % (sT1, sT0))
    a.e("v_lshlrev_b32 v%d, 4, v%d" % (vOff, vLane))
    a.e("buffer_load_dwordx4 %s, v%d, s[%d:%d], s%d offen" % (vr(XP, 4), vOff, rX, rX + 3, sT1))
    a.e("v_lshrrev_b32 v%d, 1, v%d" % (vT0, vLane))
    a.e("v_lshlrev_b32 v%d, 10, v%d" % (vT0, vT0))
    a.e("v_and_b32 v%d, 1, v%d" % (vT1, vLane))
    a.e("v_lshl_add_u32 v%d, v%d, 9, v%d" % (vSt, vT1, vT0))
    a.e("s_lshr_b32 s%d, s%d, 5" % (sT1, sT0))
    a.e("s_lshl_b32 s%d, s%d, 15" % (sT1, sT1))
    a.e("s_and_b32 s%d, s%d, 31" % (sT0, sT0))
    a.e("s_lshl_b32 s%d, s%d, 4" % (sT0, sT0))
    a.e("s_add_u32 s%d, s%d, s%d" % (sT1, sT1, sT0))
    a.e("v_add_u32 v%d, s%d, v%d" % (vSt, sT1, vSt))
    a.e("s_waitcnt vmcnt(0)")
    for i in range(4):
        a.e("v_lshlrev_b32 v%d, 16, v%d" % (XU + 2 * i, XP + i))
        a.e("v_and_b32 v%d, 0xffff0000, v%d" % (XU + 2 * i + 1, XP + i))

    def reduce(v):
        for msk in (1, 2, 4, 8, 16):
            a.e("ds_swizzle_b32 v%d, v%d offset:0x%x" % (vT0, v, (msk << 10) | 0x1f))
            a.e("s_waitcnt lgkmcnt(0)")
            a.e("v_add_f32 v%d, v%d, v%d" % (v, v, vT0))
        a.e("v_mov_b32 v%d, v%d" % (vT0, v))
        a.e("s_nop 1")
        a.e("v_permlane32_swap_b32 v%d, v%d" % (v, vT0))
        a.e("s_nop 1")
        a.e("v_add_f32 v%d, v%d, v%d" % (v, v, vT0))

    a.e("v_add_f32 v%d, v%d, v%d" % (vSum, XU, XU + 1))
    for i in range(2, 8):
        a.e("v_add_f32 v%d, v%d, v%d" % (vSum, vSum, XU + i))
    reduce(vSum)
    a.e("v_mul_f32 v%d, %s, v%d" % (vMean, f32(1.0 / D), vSum))
    a.e("v_mov_b32 v%d, 0" % vSum)
    for i in range(8):
        a.e("v_sub_f32 v%d, v%d, v%d" % (vT1, XU + i, vMean))
        a.e("v_fmac_f32 v%d, v%d, v%d" % (vSum, vT1, vT1))
    reduce(vSum)
    a.e("v_mul_f32 v%d, %s, v%d" % (vSum, f32(1.0 / D), vSum))
    round_bf16_pair(a, vMean, vSum, vMean, vSum, vT0)
    a.e("v_add_f32 v%d, %s, v%d" % (vSum, f32(1e-5), vSum))
    round_bf16_pair(a, vSum, vT1, vSum, vSum, vT0)
    a.e("v_sqrt_f32 v%d, v%d" % (vSum, vSum))
    a.e("s_nop 0")
    round_bf16_pair(a, vSum, vT1, vSum, vSum, vT0)
    a.e("v_rcp_f32 v%d, v%d" % (vR, vSum))
    for i in range(4):
        a.e("v_sub_f32 v%d, v%d, v%d" % (XU + 2 * i, XU + 2 * i, vMean))
        a.e("v_sub_f32 v%d, v%d, v%d" % (XU + 2 * i + 1, XU + 2 * i + 1, vMean))
        round_bf16_pair(a, XU + 2 * i, XU + 2 * i + 1, XU + 2 * i, XU + 2 * i + 1, vT0)
        a.e("v_mul_f32 v%d, v%d, v%d" % (XU + 2 * i, XU + 2 * i, vR))
        a.e("v_mul_f32 v%d, v%d, v%d" % (XU + 2 * i + 1, XU + 2 * i + 1, vR))
        a.e("v_cvt_pk_bf16_f32 v%d, v%d, v%d" % (XP + i, XU + 2 * i, XU + 2 * i + 1))
    a.e("buffer_store_dwordx4 %s, v%d, s[%d:%d], 0 offen" % (vr(XP, 4), vSt, rXN, rXN + 3))
    a.label("L_ln_end")
    a.e("s_endpgm")
    return name, (NWG, 256, 0), 32


def load_xn_frags(a, X, vL16, rXN, sBase, sTmp):
    for g in range(8):
        a.e("s_add_u32 s%d, s%d, %d" % (sTmp, sBase, g * 4096))
        for i in range(4):
            ks = 4 * g + i
            a.e("buffer_load_dwordx4 %s, v%d, s[%d:%d], s%d offen offset:%d" % (vr(X + 4 * ks, 4), vL16, rXN, rXN + 3, sTmp, i * 1024))


def gen_ffn1(a):
    name = "ffn1_kernel"
    kernel_header(a, name)
    NWG = 8 * 28
    sX, sWG, sWU, sWS = 4, 6, 8, 10
    rX, rWG, rWU, rXN, rH = 12, 16, 20, 24, 28
    sRB, sCB, sW, sT0, sT1, sT2 = 32, 33, 34, 35, 36, 37
    sK1, sK2 = 38, 39
    a.e("s_cmp_ge_u32 s2, %d" % NWG)
    a.e("s_cbranch_scc1 L_ffn1_end")
    a.e("s_load_dwordx2 s[%d:%d], s[0:1], 0" % (sX, sX + 1))
    a.e("s_load_dwordx2 s[%d:%d], s[0:1], 48" % (sWG, sWG + 1))
    a.e("s_load_dwordx2 s[%d:%d], s[0:1], 56" % (sWU, sWU + 1))
    a.e("s_load_dwordx2 s[%d:%d], s[0:1], 88" % (sWS, sWS + 1))
    X = 0
    ACC = 128
    FR = 192
    vLane, vT0, vT1, vT2, vT3, vT4 = 232, 233, 234, 235, 236, 237
    vA = 238
    vXo, vDW, vSum, vSq, vMean, vRinv = 242, 243, 244, 245, 246, 247
    vHo = 248
    a.e("v_and_b32 v%d, 63, v0" % vLane)
    a.e("v_lshrrev_b32 v%d, 6, v0" % vT0)
    a.e("s_and_b32 s%d, s2, 7" % sRB)
    a.e("s_lshr_b32 s%d, s2, 3" % sCB)
    a.e("v_readfirstlane_b32 s%d, v%d" % (sW, vT0))
    a.e("s_waitcnt lgkmcnt(0)")
    make_srd(a, rX, sX, sX + 1, S * D * 2)
    make_srd(a, rWG, sWG, sWG + 1, D * DF * 2)
    make_srd(a, rWU, sWU, sWU + 1, D * DF * 2)
    make_srd(a, rXN, sWS, sWS + 1, XN_BYTES, WS_XN) if WS_XN else make_srd(a, rXN, sWS, sWS + 1, XN_BYTES)
    make_srd(a, rH, sWS, sWS + 1, H_BYTES, WS_H)
    a.e("v_lshrrev_b32 v%d, 3, v%d" % (vT0, vLane))
    a.e("s_movk_i32 s%d, 3584" % sT0)
    a.e("v_mul_lo_u32 v%d, v%d, s%d" % (vT0, vT0, sT0))
    a.e("v_lshrrev_b32 v%d, 2, v%d" % (vT1, vLane))
    a.e("v_and_b32 v%d, 4, v%d" % (vT1, vT1))
    a.e("v_and_b32 v%d, 7, v%d" % (vT2, vLane))
    a.e("v_xor_b32 v%d, v%d, v%d" % (vT1, vT1, vT2))
    a.e("v_lshl_add_u32 v%d, v%d, 4, v%d" % (vDW, vT1, vT0))
    a.e("s_mul_i32 s%d, s%d, %d" % (sT0, sW, 64 * 3584))
    a.e("s_lshl_b32 s%d, s%d, 7" % (sT1, sCB))
    a.e("s_add_u32 s%d, s%d, s%d" % (sT0, sT0, sT1))
    a.e("s_lshl_b32 s%d, s%d, 13" % (sT1, sW))
    for i in range(8):
        a.e("s_add_u32 m0, s%d, %d" % (sT1, i * 1024))
        a.e("s_nop 0")
        a.e("buffer_load_dwordx4 v%d, s[%d:%d], s%d offen lds" % (vDW, rWG, rWG + 3, sT0))
        a.e("s_add_u32 m0, s%d, %d" % (sT1, 65536 + i * 1024))
        a.e("s_nop 0")
        a.e("buffer_load_dwordx4 v%d, s[%d:%d], s%d offen lds" % (vDW, rWU, rWU + 3, sT0))
        if i < 7:
            a.e("s_add_u32 s%d, s%d, %d" % (sT0, sT0, 8 * 3584))
    a.e("s_lshl_b32 s%d, s%d, 8" % (sT1, sRB))
    a.e("s_lshl_b32 s%d, s%d, 5" % (sT2, sW))
    a.e("s_add_u32 s%d, s%d, s%d" % (sT1, sT1, sT2))
    a.e("v_and_b32 v%d, 31, v%d" % (vT0, vLane))
    a.e("v_add_u32 v%d, s%d, v%d" % (vT0, sT1, vT0))
    a.e("v_lshrrev_b32 v%d, 5, v%d" % (vT1, vLane))
    a.e("v_lshlrev_b32 v%d, 4, v%d" % (vT1, vT1))
    a.e("v_lshl_add_u32 v%d, v%d, 10, v%d" % (vXo, vT0, vT1))
    a.e("s_movk_i32 s%d, 3584" % sT2)
    a.e("v_mul_lo_u32 v%d, v%d, s%d" % (vHo, vT0, sT2))
    a.e("v_add_u32 v%d, v%d, v%d" % (vHo, vHo, vT1))
    a.e("s_lshl_b32 s%d, s%d, 7" % (sT2, sCB))
    a.e("v_add_u32 v%d, s%d, v%d" % (vHo, sT2, vHo))
    a.e("v_lshlrev_b32 v%d, 4, v%d" % (vXo, vLane))
    a.e("s_lshl_b32 s%d, s%d, 10" % (sT1, sT1))
    load_xn_frags(a, X, vXo, rXN, sT1, sT2)
    tr_lane_off(a, vT2, vLane, vT0, vT1)
    a.e("v_lshrrev_b32 v%d, 5, v%d" % (vT0, vLane))
    a.e("v_lshlrev_b32 v%d, 3, v%d" % (vT0, vT0))
    a.e("v_bfe_u32 v%d, v%d, 2, 2" % (vT1, vLane))
    a.e("v_add_u32 v%d, v%d, v%d" % (vT0, vT0, vT1))
    a.e("v_lshl_add_u32 v%d, v%d, 7, v%d" % (vT2, vT0, vT2))
    a.e("v_lshrrev_b32 v%d, 1, v%d" % (vT1, vT1))
    a.e("v_lshlrev_b32 v%d, 6, v%d" % (vT1, vT1))
    a.e("v_add_u32 v%d, v%d, v%d" % (vA + 0, vT2, vT1))
    a.e("v_xor_b32 v%d, 64, v%d" % (vT1, vT1))
    a.e("v_add_u32 v%d, v%d, v%d" % (vA + 1, vT2, vT1))
    a.e("v_add_u32 v%d, 0x10000, v%d" % (vA + 2, vA + 0))
    a.e("v_add_u32 v%d, 0x10000, v%d" % (vA + 3, vA + 1))
    a.e("s_waitcnt vmcnt(0)")
    a.e("s_barrier")
    NFR = 10
    seq = [(ks, q) for ks in range(32) for q in range(4)]
    PD = 6

    def frag(n):
        return FR + 4 * (n % NFR)

    def issue(n):
        ks, q = seq[n]
        for t in range(2):
            a.lds("ds_read_b64_tr_b16 %s, v%d offset:%d" % (vr(frag(n) + 2 * t, 2), vA + q, (16 * ks + 4 * t) * 128), n)

    for n in range(PD):
        issue(n)
    for n in range(len(seq)):
        if n + PD < len(seq):
            issue(n + PD)
        ks, q = seq[n]
        a.wait_lds(n)
        acc = ACC + 16 * q
        a.e("v_mfma_f32_32x32x16_bf16 %s, %s, %s, %s" % (vr(acc, 16), vr(frag(n), 4), vr(X + 4 * ks, 4), "0" if ks == 0 else vr(acc, 16)))
    a.e("s_nop 15")
    a.e("s_nop 3")
    KK = -2.0 * math.sqrt(2.0 / math.pi) * math.log2(math.e)
    a.e("s_mov_b32 s%d, %s" % (sK1, f32(KK * 0.044715)))
    a.e("v_mov_b32 v%d, %s" % (vT4, f32(KK)))
    for cs in range(2):
        G = ACC + 16 * cs
        U = ACC + 32 + 16 * cs
        for p in range(8):
            g0, g1, u0, u1 = G + 2 * p, G + 2 * p + 1, U + 2 * p, U + 2 * p + 1
            round_bf16_pair(a, g0, g1, g0, g1, vT0)
            round_bf16_pair(a, u0, u1, u0, u1, vT0)
            for g, t in ((g0, vT0), (g1, vT1)):
                a.e("v_mul_f32 v%d, v%d, v%d" % (t, g, g))
                a.e("v_fma_f32 v%d, v%d, s%d, v%d" % (t, t, sK1, vT4))
                a.e("v_mul_f32 v%d, v%d, v%d" % (t, t, g))
            a.e("v_exp_f32 v%d, v%d" % (vT0, vT0))
            a.e("v_exp_f32 v%d, v%d" % (vT1, vT1))
            a.e("s_nop 0")
            a.e("v_add_f32 v%d, 1.0, v%d" % (vT0, vT0))
            a.e("v_add_f32 v%d, 1.0, v%d" % (vT1, vT1))
            a.e("v_rcp_f32 v%d, v%d" % (vT0, vT0))
            a.e("v_rcp_f32 v%d, v%d" % (vT1, vT1))
            a.e("s_nop 0")
            a.e("v_mul_f32 v%d, v%d, v%d" % (g0, g0, vT0))
            a.e("v_mul_f32 v%d, v%d, v%d" % (g1, g1, vT1))
            round_bf16_pair(a, g0, g1, g0, g1, vT0)
            a.e("v_mul_f32 v%d, v%d, v%d" % (g0, g0, u0))
            a.e("v_mul_f32 v%d, v%d, v%d" % (g1, g1, u1))
            a.e("v_cvt_pk_bf16_f32 v%d, v%d, v%d" % (G + p, g0, g1))
        a.e("buffer_store_dwordx4 %s, v%d, s[%d:%d], 0 offen offset:%d" % (vr(G, 4), vHo, rH, rH + 3, cs * 64))
        a.e("buffer_store_dwordx4 %s, v%d, s[%d:%d], 0 offen offset:%d" % (vr(G + 4, 4), vHo, rH, rH + 3, cs * 64 + 32))
    a.label("L_ffn1_end")
    a.e("s_endpgm")
    return name, (NWG, 512, 131072), 256


def gen_attn(a):
    name = "attn_kernel"
    kernel_header(a, name)
    NWG = 256
    sK, sV, sWQ, sWS = 4, 6, 8, 10
    rK, rV, rWQ, rXN, rO = 12, 16, 20, 24, 28
    sHead, sQB, sW, sT0, sT1, sT2 = 32, 33, 34, 35, 36, 37
    sC, sJ, sKoff, sVoff, sM0K, sM0V = 38, 39, 40, 41, 42, 43
    a.e("s_cmp_ge_u32 s2, %d" % NWG)
    a.e("s_cbranch_scc1 L_attn_end")
    a.e("s_load_dwordx2 s[%d:%d], s[0:1], 8" % (sK, sK + 1))
    a.e("s_load_dwordx2 s[%d:%d], s[0:1], 16" % (sV, sV + 1))
    a.e("s_load_dwordx2 s[%d:%d], s[0:1], 24" % (sWQ, sWQ + 1))
    a.e("s_load_dwordx2 s[%d:%d], s[0:1], 88" % (sWS, sWS + 1))
    O = 0
    SB = [64, 96]
    Q = 128
    FR = 160
    NFR = P('A_NFR', 8)
    X = 0
    QACC = 160
    PFR = 192
    vKa = 224
    vVa = 232
    vDK0, vDK1, vDV = 236, 237, 238
    vM, vM8, vL0, vL1 = 239, 240, 241, 242
    vT0, vT1, vT2, vT3, vT4 = 243, 244, 245, 246, 247
    vLane, vOo = 248, 249
    vWa = 250
    vDW = 254
    LDS_K = 98304
    LDS_V = 0
    a.e("v_and_b32 v%d, 63, v0" % vLane)
    a.e("v_lshrrev_b32 v%d, 6, v0" % vT0)
    a.e("s_lshr_b32 s%d, s2, 6" % sHead)
    a.e("s_lshl_b32 s%d, s%d, 3" % (sHead, sHead))
    a.e("s_and_b32 s%d, s2, 7" % sT0)
    a.e("s_or_b32 s%d, s%d, s%d" % (sHead, sHead, sT0))
    a.e("s_bfe_u32 s%d, s2, 0x30003" % sQB)
    a.e("v_readfirstlane_b32 s%d, v%d" % (sW, vT0))
    a.e("s_waitcnt lgkmcnt(0)")
    a.e("s_lshl_b32 s%d, s%d, 19" % (sT0, sHead))
    make_srd_s(a, rK, sK, sK + 1, S * DH * 2, sT0)
    make_srd_s(a, rV, sV, sV + 1, S * DH * 2, sT0)
    make_srd(a, rWQ, sWQ, sWQ + 1, D * H * DH * 2)
    make_srd(a, rXN, sWS, sWS + 1, XN_BYTES)
    make_srd(a, rO, sWS, sWS + 1, O_BYTES, WS_O)
    STAMP = P('A_STAMP', 0)
    stamp_n = [0]
    def stamp():
        if not STAMP:
            return
        a.e("s_memtime s[%d:%d]" % (60 + 2 * stamp_n[0], 61 + 2 * stamp_n[0]))
        stamp_n[0] += 1
    stamp()
    a.e("v_lshrrev_b32 v%d, 4, v%d" % (vT0, vLane))
    a.e("v_and_b32 v%d, 15, v%d" % (vT1, vLane))
    a.e("v_lshlrev_b32 v%d, 2, v%d" % (vT2, vT0))
    a.e("v_xor_b32 v%d, v%d, v%d" % (vT2, vT2, vT1))
    a.e("v_lshlrev_b32 v%d, 4, v%d" % (vT2, vT2))
    a.e("v_lshl_add_u32 v%d, v%d, 8, v%d" % (vDV, vT0, vT2))
    a.e("v_lshl_add_u32 v%d, v%d, 13, v%d" % (vDW, vT0, vT2))
    a.e("s_and_b32 s%d, s%d, 1" % (sT0, sW))
    a.e("s_lshl_b32 s%d, s%d, 3" % (sT0, sT0))
    a.e("v_add_u32 v%d, s%d, v%d" % (vT2, sT0, vT0))
    a.e("v_xor_b32 v%d, v%d, v%d" % (vT3, vT2, vT1))
    a.e("v_lshlrev_b32 v%d, 4, v%d" % (vT3, vT3))
    a.e("v_lshl_add_u32 v%d, v%d, 8, v%d" % (vDK0, vT0, vT3))
    a.e("v_add_u32 v%d, 4, v%d" % (vT2, vT2))
    a.e("v_xor_b32 v%d, v%d, v%d" % (vT3, vT2, vT1))
    a.e("v_lshlrev_b32 v%d, 4, v%d" % (vT3, vT3))
    a.e("v_lshl_add_u32 v%d, v%d, 8, v%d" % (vDK1, vT0, vT3))
    a.e("s_lshl_b32 s%d, s%d, 11" % (sT1, sW))
    a.e("s_add_u32 s%d, s%d, %d" % (sM0K, sT1, LDS_K))
    a.e("s_add_u32 s%d, s%d, %d" % (sM0V, sT1, LDS_V))

    def dma_k(slot, soff):
        a.e("s_add_u32 m0, s%d, %d" % (sM0K, slot * 16384))
        a.e("s_nop 0")
        a.e("buffer_load_dwordx4 v%d, s[%d:%d], s%d offen lds" % (vDK0, rK, rK + 3, soff))
        a.e("buffer_load_dwordx4 v%d, s[%d:%d], s%d offen offset:1024 lds" % (vDK1, rK, rK + 3, soff))

    def dma_v(slot, soff):
        a.e("s_add_u32 m0, s%d, %d" % (sM0V, slot * 16384))
        a.e("s_nop 0")
        a.e("buffer_load_dwordx4 v%d, s[%d:%d], s%d offen lds" % (vDV, rV, rV + 3, soff))
        a.e("buffer_load_dwordx4 v%d, s[%d:%d], s%d offen offset:1024 lds" % (vDV, rV, rV + 3, soff))

    a.e("s_lshl_b32 s%d, s%d, 19" % (sT0, sW))
    a.e("s_lshl_b32 s%d, s%d, 8" % (sT2, sHead))
    a.e("s_add_u32 s%d, s%d, s%d" % (sT0, sT0, sT2))
    a.e("s_lshl_b32 s%d, s%d, 14" % (sT2, sW))
    for i in range(16):
        a.e("s_add_u32 m0, s%d, %d" % (sT2, i * 1024))
        a.e("s_nop 0")
        a.e("buffer_load_dwordx4 v%d, s[%d:%d], s%d offen lds" % (vDW, rWQ, rWQ + 3, sT0))
        if i < 15:
            a.e("s_add_u32 s%d, s%d, %d" % (sT0, sT0, 4 * 8192))
    a.e("s_mov_b32 s%d, s%d" % (sKoff, sT1))
    dma_k(2, sKoff)
    a.e("s_add_u32 s%d, s%d, 16384" % (sKoff, sKoff))
    dma_k(3, sKoff)
    a.e("s_add_u32 s%d, s%d, 16384" % (sKoff, sKoff))
    a.e("s_mov_b32 s%d, s%d" % (sVoff, sT1))
    a.e("s_lshl_b32 s%d, s%d, 8" % (sT0, sQB))
    a.e("s_lshl_b32 s%d, s%d, 5" % (sT2, sW))
    a.e("s_add_u32 s%d, s%d, s%d" % (sT0, sT0, sT2))
    a.e("v_and_b32 v%d, 31, v%d" % (vT0, vLane))
    a.e("v_add_u32 v%d, s%d, v%d" % (vT0, sT0, vT0))
    a.e("v_lshrrev_b32 v%d, 5, v%d" % (vT1, vLane))
    a.e("v_lshlrev_b32 v%d, 4, v%d" % (vT1, vT1))
    a.e("v_lshlrev_b32 v%d, 4, v%d" % (vT2, vLane))
    a.e("s_lshl_b32 s%d, s%d, 10" % (sT0, sT0))
    load_xn_frags(a, X, vT2, rXN, sT0, sT2)
    a.e("v_lshl_add_u32 v%d, v%d, 13, v%d" % (vOo, vT0, vT1))
    a.e("s_lshl_b32 s%d, s%d, 8" % (sT2, sHead))
    a.e("v_add_u32 v%d, s%d, v%d" % (vOo, sT2, vOo))
    tr_lane_off(a, vT2, vLane, vT0, vT1)
    a.e("v_bfe_u32 v%d, v%d, 2, 2" % (vT1, vLane))
    a.e("v_lshrrev_b32 v%d, 5, v%d" % (vT0, vLane))
    a.e("v_lshl_add_u32 v%d, v%d, 3, v%d" % (vT3, vT0, vT1))
    a.e("v_lshl_add_u32 v%d, v%d, 8, v%d" % (vT3, vT3, vT2))
    a.e("v_lshl_add_u32 v%d, v%d, 2, v%d" % (vT4, vT0, vT1))
    a.e("v_lshl_add_u32 v%d, v%d, 8, v%d" % (vT4, vT4, vT2))
    for db in range(4):
        a.e("v_xor_b32 v%d, %d, v%d" % (vT2, db, vT1))
        a.e("v_lshlrev_b32 v%d, 6, v%d" % (vT2, vT2))
        a.e("v_add_u32 v%d, v%d, v%d" % (vWa + db, vT3, vT2))
        if LDS_V:
            a.e("v_add_u32 v%d, %d, v%d" % (vT2, LDS_V, vT2))
        a.e("v_add_u32 v%d, v%d, v%d" % (vVa + db, vT4, vT2))
    a.e("v_and_b32 v%d, 31, v%d" % (vT1, vLane))
    a.e("v_and_b32 v%d, 15, v%d" % (vT2, vLane))
    a.e("v_xor_b32 v%d, v%d, v%d" % (vT2, vT2, vT0))
    a.e("v_lshlrev_b32 v%d, 8, v%d" % (vT1, vT1))
    a.e("v_add_u32 v%d, 0x%x, v%d" % (vT1, LDS_K, vT1))
    for ks in range(8):
        a.e("v_xor_b32 v%d, %d, v%d" % (vT3, 2 * ks, vT2))
        a.e("v_lshl_add_u32 v%d, v%d, 4, v%d" % (vKa + ks, vT3, vT1))
    a.e("s_mov_b32 s%d, %s" % (sC, f32(math.log2(math.e) / math.sqrt(DH))))
    a.e("s_waitcnt vmcnt(0)")
    a.e("s_barrier")
    stamp()
    for ps in range(2):
        seq = [(ks, q) for ks in range(32) for q in range(2)]
        PD = 5
        NP = 8

        def pfrag(n):
            return PFR + 4 * (n % NP)

        def pissue(n):
            ks, q = seq[n]
            db = 2 * ps + q
            if n == 32 + 0 and False:
                pass
            for t in range(2):
                off = ((16 * ks + 4 * t) * 256) & 0xffff
                a.lds("ds_read_b64_tr_b16 %s, v%d offset:%d" % (vr(pfrag(n) + 2 * t, 2), vWa + db, off), n)

        for n in range(PD):
            pissue(n)
        for n in range(len(seq)):
            if n + PD < len(seq):
                if n + PD == 32:
                    for q in range(2):
                        a.e("v_add_u32 v%d, 0x10000, v%d" % (vWa + 2 * ps + q, vWa + 2 * ps + q))
                pissue(n + PD)
            ks, q = seq[n]
            a.wait_lds(n)
            acc = QACC + 16 * q
            a.e("v_mfma_f32_32x32x16_bf16 %s, %s, %s, %s" % (vr(acc, 16), vr(pfrag(n), 4), vr(X + 4 * ks, 4), "0" if ks == 0 else vr(acc, 16)))
        a.e("s_nop 15")
        a.e("s_nop 3")
        for q in range(2):
            db = 2 * ps + q
            for p in range(8):
                a.e("v_cvt_pk_bf16_f32 v%d, v%d, v%d" % (Q + 8 * db + p, QACC + 16 * q + 2 * p, QACC + 16 * q + 2 * p + 1))
    stamp()
    a.e("s_barrier")
    for t in range(2):
        dma_v(t, sVoff)
        a.e("s_add_u32 s%d, s%d, 16384" % (sVoff, sVoff))
    dma_k(0, sKoff)
    a.e("s_add_u32 s%d, s%d, 16384" % (sKoff, sKoff))
    for i in range(64):
        a.e("v_mov_b32 v%d, 0" % (O + i))
    a.e("v_mov_b32 v%d, 0xff800000" % vM)
    a.e("v_mov_b32 v%d, 0xff800000" % vM8)
    a.e("v_mov_b32 v%d, 0" % vL0)
    a.e("v_mov_b32 v%d, 0" % vL1)

    fr_ctr = [0]

    def kread(kslot, m):
        kb, ks = m >> 3, m & 7
        f = FR + 4 * (fr_ctr[0] % NFR)
        tag = ("f", fr_ctr[0])
        fr_ctr[0] += 1
        a.lds("ds_read_b128 %s, v%d offset:%d" % (vr(f, 4), vKa + ks, kslot * 16384 + kb * 8192), tag)
        return (f, tag)

    def vread(vslot, m):
        s_, db = m >> 2, m & 3
        f = FR + 4 * (fr_ctr[0] % NFR)
        tag = ("f", fr_ctr[0])
        fr_ctr[0] += 1
        for t in range(2):
            a.lds("ds_read_b64_tr_b16 %s, v%d offset:%d" % (vr(f + 2 * t, 2), vVa + db, vslot * 16384 + (16 * s_ + 8 * t) * 256), tag)
        return (f, tag)

    def softmax_ops(cur):
        ops = []
        for g in range(8):
            b = cur + 4 * g
            for i in range(4):
                ops.append("v_fma_f32 v%d, v%d, s%d, -v%d" % (b + i, b + i, sC, vM))
            for i in range(4):
                ops.append("v_exp_f32 v%d, v%d" % (b + i, b + i))
            for i in range(4):
                l = vL0 if i % 2 == 0 else vL1
                ops.append("v_add_f32 v%d, v%d, v%d" % (l, l, b + i))
            ops.append("v_cvt_pk_bf16_f32 v%d, v%d, v%d" % (cur + 2 * g, b, b + 1))
            ops.append("v_cvt_pk_bf16_f32 v%d, v%d, v%d" % (cur + 2 * g + 1, b + 2, b + 3))
        return ops

    def max_ops(nxt):
        ops = []
        ops.append("v_max3_f32 v%d, v%d, v%d, v%d" % (vT0, nxt + 0, nxt + 1, nxt + 2))
        ops.append("v_max3_f32 v%d, v%d, v%d, v%d" % (vT1, nxt + 16, nxt + 17, nxt + 18))
        for i in range(3, 15, 2):
            ops.append("v_max3_f32 v%d, v%d, v%d, v%d" % (vT0, vT0, nxt + i, nxt + i + 1))
            ops.append("v_max3_f32 v%d, v%d, v%d, v%d" % (vT1, vT1, nxt + 16 + i, nxt + 16 + i + 1))
        ops.append("v_max3_f32 v%d, v%d, v%d, v%d" % (vT0, vT0, nxt + 15, nxt + 31))
        ops.append("v_max_f32 v%d, v%d, v%d" % (vT0, vT0, vT1))
        ops.append("v_mov_b32 v%d, v%d" % (vT1, vT0))
        ops.append("s_nop 1")
        ops.append("v_permlane32_swap_b32 v%d, v%d" % (vT0, vT1))
        ops.append("s_nop 1")
        ops.append("v_max_f32 v%d, v%d, v%d" % (vT0, vT0, vT1))
        ops.append("v_mul_f32 v%d, s%d, v%d" % (vT0, sC, vT0))
        return ops

    rescale_sites = []

    def rescale_check():
        n = a.nlabel
        a.nlabel += 1
        a.e("v_cmp_gt_f32 vcc, v%d, v%d" % (vT0, vM8))
        a.e("s_cbranch_vccnz L_resc_%d" % n)
        a.label("L_resc_ret_%d" % n)
        rescale_sites.append(n)

    PD = P('A_PD', 4)
    q = [kread(2, m) for m in range(PD)]
    for m in range(16):
        if m + PD < 16:
            q.append(kread(2, m + PD))
        f, tag = q[m]
        a.wait_lds(tag)
        kb, ks = m >> 3, m & 7
        acc = SB[0] + 16 * kb
        a.e("v_mfma_f32_32x32x16_bf16 %s, %s, %s, %s" % (vr(acc, 16), vr(f, 4), vr(Q + 4 * ks, 4), "0" if ks == 0 else vr(acc, 16)))
    a.e("s_nop 15")
    a.e("s_nop 3")
    for op in max_ops(SB[0]):
        a.e(op)
    rescale_check()
    a.e("s_waitcnt vmcnt(0)")
    a.e("s_barrier")
    a.e("s_add_u32 m0, s%d, %d" % (sM0K, 1 * 16384))
    a.e("s_nop 0")
    a.e("buffer_load_dwordx4 v%d, s[%d:%d], s%d offen lds" % (vDK0, rK, rK + 3, sKoff))
    carry = [kread(3, m) for m in range(PD)]
    a.e("s_mov_b32 s%d, 0" % sJ)
    stamp()
    a.nolds = True
    a.label("L_attn_loop")
    UNR = 4
    for u in range(UNR):
        cur, nxt = SB[u & 1], SB[(u + 1) & 1]
        kslot = (u + 1 + 2) & 3
        kslot_n = (u + 2 + 2) & 3
        vslot = u & 3
        sm = softmax_ops(cur)
        mx = max_ops(nxt)
        fill = [[] for _ in range(32)]
        n1 = 84
        for i in range(n1):
            fill[i * 16 // n1].append(sm[i])
        for i in range(28):
            fill[16 + i * 6 // 28].append(sm[n1 + i])
        for i, op in enumerate(mx):
            fill[22 + i * 10 // len(mx)].append(op)
        frags = list(carry)
        carry = []
        dpos = {P('A_D0', 1): 1, P('A_D1', 7): 2, P('A_D2', 13): 3}
        for m in range(32):
            mm = m + PD
            if mm < 16:
                frags.append(kread(kslot, mm))
            elif mm < 32:
                frags.append(vread(vslot, mm - 16))
            else:
                carry.append(kread(kslot_n, mm - 32))
            f, tag = frags[m]
            a.wait_lds(tag)
            if m < 16:
                kb, ks = m >> 3, m & 7
                acc = nxt + 16 * kb
                a.e("v_mfma_f32_32x32x16_bf16 %s, %s, %s, %s" % (vr(acc, 16), vr(f, 4), vr(Q + 4 * ks, 4), "0" if ks == 0 else vr(acc, 16)))
            else:
                s_, db = (m - 16) >> 2, (m - 16) & 3
                acc = O + 16 * db
                a.e("v_mfma_f32_32x32x16_bf16 %s, %s, %s, %s" % (vr(acc, 16), vr(f, 4), vr(cur + 4 * s_, 4), vr(acc, 16)))
            for op in fill[m]:
                if P('X_NOVALU', 0) and not op.startswith('s_'):
                    continue
                if P('X_NOEXP', 0) and op.startswith('v_exp'):
                    continue
                a.e(op)
            if m in dpos and not P('X_NODMA', 0):
                pc = dpos[m]
                if pc == 1:
                    a.e("buffer_load_dwordx4 v%d, s[%d:%d], s%d offen offset:1024 lds" % (vDK1, rK, rK + 3, sKoff))
                    a.e("s_add_u32 s%d, s%d, 16384" % (sKoff, sKoff))
                elif pc == 2:
                    a.e("s_add_u32 m0, s%d, %d" % (sM0V, ((u + 2) & 3) * 16384))
                    a.e("s_nop 0")
                    a.e("buffer_load_dwordx4 v%d, s[%d:%d], s%d offen lds" % (vDV, rV, rV + 3, sVoff))
                else:
                    a.e("buffer_load_dwordx4 v%d, s[%d:%d], s%d offen offset:1024 lds" % (vDV, rV, rV + 3, sVoff))
                    a.e("s_add_u32 s%d, s%d, 16384" % (sVoff, sVoff))
            if m == 32 - PD - 1:
                if not P('X_NOBAR2', 0):
                    a.e("s_waitcnt vmcnt(4)")
                    a.e("s_barrier")
            if m == 32 - PD + 1 and not P('X_NODMA', 0):
                a.e("s_add_u32 m0, s%d, %d" % (sM0K, ((u + 4 + 2) & 3) * 16384))
                a.e("s_nop 0")
                a.e("buffer_load_dwordx4 v%d, s[%d:%d], s%d offen lds" % (vDK0, rK, rK + 3, sKoff))
        if u == UNR - 1:
            a.e("s_cmp_eq_u32 s%d, %d" % (sJ, 32 - UNR))
            a.e("s_cbranch_scc1 L_attn_done")
        rescale_check()
    a.e("s_add_u32 s%d, s%d, %d" % (sJ, sJ, UNR))
    a.e("s_branch L_attn_loop")
    a.label("L_attn_done")
    a.nolds = False
    stamp()
    a.wait_lds_all()
    a.e("s_nop 15")
    a.e("s_nop 3")
    a.e("v_add_f32 v%d, v%d, v%d" % (vL0, vL0, vL1))
    a.e("v_mov_b32 v%d, v%d" % (vT1, vL0))
    a.e("s_nop 1")
    a.e("v_permlane32_swap_b32 v%d, v%d" % (vL0, vT1))
    a.e("s_nop 1")
    a.e("v_add_f32 v%d, v%d, v%d" % (vL0, vL0, vT1))
    a.e("v_rcp_f32 v%d, v%d" % (vL0, vL0))
    a.e("s_nop 0")
    for db in range(4):
        for i in range(16):
            a.e("v_mul_f32 v%d, v%d, v%d" % (O + 16 * db + i, O + 16 * db + i, vL0))
        for p in range(8):
            a.e("v_cvt_pk_bf16_f32 v%d, v%d, v%d" % (O + 16 * db + p, O + 16 * db + 2 * p, O + 16 * db + 2 * p + 1))
        a.e("buffer_store_dwordx4 %s, v%d, s[%d:%d], 0 offen offset:%d" % (vr(O + 16 * db, 4), vOo, rO, rO + 3, db * 64))
        a.e("buffer_store_dwordx4 %s, v%d, s[%d:%d], 0 offen offset:%d" % (vr(O + 16 * db + 4, 4), vOo, rO, rO + 3, db * 64 + 32))
    if STAMP:
        stamp()
        a.e("s_waitcnt vmcnt(0) lgkmcnt(0)")
        stamp()
        a.e("s_waitcnt lgkmcnt(0)")
        make_srd(a, 88, sWS, sWS + 1, 1 << 20, 0x3000000)
        a.e("s_lshl_b32 s%d, s2, 3" % sT0)
        a.e("s_add_u32 s%d, s%d, s%d" % (sT0, sT0, sW))
        a.e("s_lshl_b32 s%d, s%d, 6" % (sT0, sT0))
        a.e("v_mov_b32 v%d, s%d" % (vT0, sT0))
        for i in range(stamp_n[0]):
            a.e("v_mov_b32 v%d, s%d" % (vT1, 60 + 2 * i))
            a.e("buffer_store_dword v%d, v%d, s[88:91], 0 offen offset:%d" % (vT1, vT0, 4 * i))
            a.e("s_nop 1")
    a.e("s_branch L_attn_end")
    for n in rescale_sites:
        a.label("L_resc_%d" % n)
        a.e("s_nop 15")
        a.e("s_nop 3")
        a.e("v_max_f32 v%d, v%d, v%d" % (vT1, vT0, vM))
        a.e("v_sub_f32 v%d, v%d, v%d" % (vT2, vM, vT1))
        a.e("v_exp_f32 v%d, v%d" % (vT2, vT2))
        a.e("v_mov_b32 v%d, v%d" % (vM, vT1))
        a.e("v_add_f32 v%d, %s, v%d" % (vM8, f32(float(P('A_T', 24))), vT1))
        for i in range(64):
            a.e("v_mul_f32 v%d, v%d, v%d" % (O + i, O + i, vT2))
        a.e("v_mul_f32 v%d, v%d, v%d" % (vL0, vL0, vT2))
        a.e("v_mul_f32 v%d, v%d, v%d" % (vL1, vL1, vT2))
        a.e("s_nop 1")
        a.e("s_branch L_resc_ret_%d" % n)
    a.label("L_attn_end")
    a.e("s_endpgm")
    return name, (NWG, 512, 163840), 256


def gen_out(a):
    name = "outp_kernel"
    kernel_header(a, name)
    NWG = 256
    sX, sWO, sWD, sOut, sWS = 4, 6, 8, 10, 12
    rX, rWO, rWD, rOut, rOW, rHW = 16, 20, 24, 28, 32, 36
    sTB, sNB, sW, sT0, sT1, sT2 = 40, 41, 42, 43, 44, 45
    sA, sB, sLB, sCnt = 46, 47, 48, 49
    a.e("s_cmp_ge_u32 s2, %d" % NWG)
    a.e("s_cbranch_scc1 L_outp_end")
    a.e("s_load_dwordx2 s[%d:%d], s[0:1], 0" % (sX, sX + 1))
    a.e("s_load_dwordx2 s[%d:%d], s[0:1], 32" % (sWO, sWO + 1))
    a.e("s_load_dwordx2 s[%d:%d], s[0:1], 64" % (sWD, sWD + 1))
    a.e("s_load_dwordx2 s[%d:%d], s[0:1], 72" % (sOut, sOut + 1))
    a.e("s_load_dwordx2 s[%d:%d], s[0:1], 88" % (sWS, sWS + 1))
    ACC = [0, 64]
    FA = 128
    FB = 144
    vLane, vT0, vT1, vT2, vT3, vT4 = 160, 161, 162, 163, 164, 165
    vBa = 166
    vAa = 170
    vDAe = [172, 174]
    vDAo = [173, 175]
    vDW = 176
    vXo = 177
    vR = 178
    XR = 180
    a.e("v_and_b32 v%d, 63, v0" % vLane)
    a.e("v_lshrrev_b32 v%d, 6, v0" % vT0)
    if P('C_MAP', 1):
        a.e("s_and_b32 s%d, s2, 31" % sTB)
        a.e("s_lshr_b32 s%d, s2, 5" % sNB)
    else:
        a.e("s_lshr_b32 s%d, s2, 3" % sTB)
        a.e("s_and_b32 s%d, s2, 7" % sNB)
    a.e("v_readfirstlane_b32 s%d, v%d" % (sW, vT0))
    a.e("s_waitcnt lgkmcnt(0)")
    make_srd(a, rX, sX, sX + 1, S * D * 2)
    make_srd(a, rWO, sWO, sWO + 1, H * DH * D * 2)
    make_srd(a, rWD, sWD, sWD + 1, DF * D * 2)
    make_srd(a, rOut, sOut, sOut + 1, S * D * 2)
    make_srd(a, rOW, sWS, sWS + 1, O_BYTES, WS_O)
    make_srd(a, rHW, sWS, sWS + 1, H_BYTES, WS_H)
    a.e("s_lshl_b32 s%d, s%d, 15" % (sLB, sW))
    a.e("v_lshrrev_b32 v%d, 3, v%d" % (vT0, vLane))
    a.e("v_and_b32 v%d, 7, v%d" % (vT1, vLane))
    a.e("v_lshrrev_b32 v%d, 4, v%d" % (vT2, vLane))
    a.e("v_xor_b32 v%d, v%d, v%d" % (vT3, vT1, vT2))
    a.e("v_lshlrev_b32 v%d, 4, v%d" % (vT3, vT3))
    a.e("v_xor_b32 v%d, 64, v%d" % (vT4, vT3))
    for mi, stride in enumerate((8192, 3584)):
        a.e("s_movk_i32 s%d, %d" % (sT0, stride))
        a.e("v_mul_lo_u32 v%d, v%d, s%d" % (vDAe[mi], vT0, sT0))
        a.e("v_add_u32 v%d, v%d, v%d" % (vDAo[mi], vDAe[mi], vT4))
        a.e("v_add_u32 v%d, v%d, v%d" % (vDAe[mi], vDAe[mi], vT3))
    a.e("v_and_b32 v%d, 1, v%d" % (vT2, vT2))
    a.e("v_lshlrev_b32 v%d, 2, v%d" % (vT2, vT2))
    a.e("v_xor_b32 v%d, v%d, v%d" % (vT2, vT2, vT1))
    a.e("v_lshlrev_b32 v%d, 4, v%d" % (vT2, vT2))
    a.e("v_lshl_add_u32 v%d, v%d, 10, v%d" % (vDW, vT0, vT2))
    a.e("v_and_b32 v%d, 31, v%d" % (vT0, vLane))
    a.e("v_bfe_u32 v%d, v%d, 1, 3" % (vT1, vLane))
    a.e("v_lshrrev_b32 v%d, 5, v%d" % (vT2, vLane))
    a.e("v_xor_b32 v%d, v%d, v%d" % (vT1, vT1, vT2))
    a.e("v_lshlrev_b32 v%d, 7, v%d" % (vT0, vT0))
    a.e("v_add_u32 v%d, s%d, v%d" % (vT0, sLB, vT0))
    for ks in range(4):
        a.e("v_xor_b32 v%d, %d, v%d" % (vT3, 2 * ks, vT1))
        a.e("v_lshl_add_u32 v%d, v%d, 4, v%d" % (vBa + ks, vT3, vT0))
    tr_lane_off(a, vT3, vLane, vT0, vT1)
    a.e("v_bfe_u32 v%d, v%d, 2, 2" % (vT1, vLane))
    a.e("v_lshl_add_u32 v%d, v%d, 3, v%d" % (vT0, vT2, vT1))
    a.e("v_lshl_add_u32 v%d, v%d, 7, v%d" % (vT3, vT0, vT3))
    a.e("v_add_u32 v%d, 0x2000, v%d" % (vT3, vT3))
    a.e("v_add_u32 v%d, s%d, v%d" % (vT3, sLB, vT3))
    a.e("v_lshrrev_b32 v%d, 1, v%d" % (vT1, vT1))
    a.e("v_lshlrev_b32 v%d, 6, v%d" % (vT1, vT1))
    a.e("v_add_u32 v%d, v%d, v%d" % (vAa + 0, vT3, vT1))
    a.e("v_xor_b32 v%d, 64, v%d" % (vT1, vT1))
    a.e("v_add_u32 v%d, v%d, v%d" % (vAa + 1, vT3, vT1))

    def dma_chunk(mi, stage):
        stride = (8192, 3584)[mi]
        rAct = (rOW, rHW)[mi]
        rWt = (rWO, rWD)[mi]
        a.e("s_mov_b32 s%d, s%d" % (sT0, sA))
        a.e("s_mov_b32 s%d, s%d" % (sT1, sB))
        for i in range(8):
            a.e("s_add_u32 m0, s%d, %d" % (sLB, stage * 16384 + i * 1024))
            a.e("s_nop 0")
            a.e("buffer_load_dwordx4 v%d, s[%d:%d], s%d offen lds" % ((vDAe if i % 2 == 0 else vDAo)[mi], rAct, rAct + 3, sT0))
            a.e("s_add_u32 m0, s%d, %d" % (sLB, stage * 16384 + 8192 + i * 1024))
            a.e("s_nop 0")
            a.e("buffer_load_dwordx4 v%d, s[%d:%d], s%d offen lds" % (vDW, rWt, rWt + 3, sT1))
            if i < 7:
                a.e("s_add_u32 s%d, s%d, %d" % (sT0, sT0, 8 * stride))
                a.e("s_add_u32 s%d, s%d, %d" % (sT1, sT1, 8 * 1024))
        a.e("s_add_u32 s%d, s%d, %d" % (sA, sA, 4 * 128))
        a.e("s_add_u32 s%d, s%d, %d" % (sB, sB, 4 * 64 * 1024))

    def compute_chunk(acc, stage, first):
        def rd(ks):
            b = ks & 1
            for nb in range(2):
                for t in range(2):
                    a.lds("ds_read_b64_tr_b16 %s, v%d offset:%d" % (vr(FA + 8 * b + 4 * nb + 2 * t, 2), vAa + nb, stage * 16384 + (16 * ks + 4 * t) * 128), ("c", ks))
            for tb in range(2):
                a.lds("ds_read_b128 %s, v%d offset:%d" % (vr(FB + 8 * b + 4 * tb, 4), vBa + ks, stage * 16384 + tb * 4096), ("c", ks))
        rd(0)
        for ks in range(4):
            if ks < 3:
                rd(ks + 1)
            a.wait_lds(("c", ks))
            b = ks & 1
            for nb in range(2):
                for tb in range(2):
                    d = acc + 16 * (nb * 2 + tb)
                    a.e("v_mfma_f32_32x32x16_bf16 %s, %s, %s, %s" % (vr(d, 16), vr(FA + 8 * b + 4 * nb, 4), vr(FB + 8 * b + 4 * tb, 4), "0" if (first and ks == 0) else vr(d, 16)))

    for mi, nchunk in ((0, 16), (1, 7)):
        stride = (8192, 3584)[mi]
        a.e("s_mul_i32 s%d, s%d, %d" % (sA, sTB, 64 * stride))
        a.e("s_lshl_b32 s%d, s%d, 7" % (sT0, sW))
        a.e("s_add_u32 s%d, s%d, s%d" % (sA, sA, sT0))
        a.e("s_lshl_b32 s%d, s%d, 16" % (sB, sW))
        a.e("s_lshl_b32 s%d, s%d, 7" % (sT0, sNB))
        a.e("s_add_u32 s%d, s%d, s%d" % (sB, sB, sT0))
        acc = ACC[mi]
        dma_chunk(mi, 0)
        dma_chunk(mi, 1)
        a.e("s_waitcnt vmcnt(16)")
        compute_chunk(acc, 0, True)
        rem = nchunk - 1
        npair = (rem - 1) // 2 if (rem - 1) >= 2 else 0
        lab = "L_outp_loop%d" % mi
        if npair > 0:
            a.e("s_mov_b32 s%d, %d" % (sCnt, npair))
            a.label(lab)
            dma_chunk(mi, 0)
            a.e("s_waitcnt vmcnt(16)")
            compute_chunk(acc, 1, False)
            dma_chunk(mi, 1)
            a.e("s_waitcnt vmcnt(16)")
            compute_chunk(acc, 0, False)
            a.e("s_sub_u32 s%d, s%d, 1" % (sCnt, sCnt))
            a.e("s_cmp_lg_u32 s%d, 0" % sCnt)
            a.e("s_cbranch_scc1 %s" % lab)
        done = 1 + 2 * npair
        left = nchunk - done
        if left == 2:
            dma_chunk(mi, 0)
            a.e("s_waitcnt vmcnt(16)")
            compute_chunk(acc, 1, False)
            a.e("s_waitcnt vmcnt(0)")
            compute_chunk(acc, 0, False)
        elif left == 1:
            a.e("s_waitcnt vmcnt(0)")
            compute_chunk(acc, 1, False)
        else:
            raise Exception("bad chunk schedule %d" % left)
    a.e("s_nop 15")
    a.e("s_nop 3")
    a.e("s_and_b32 s%d, s%d, 1" % (sT0, sW))
    a.e("s_lshl_b32 s%d, s%d, 5" % (sT0, sT0))
    a.e("s_lshl_b32 s%d, s%d, 6" % (sT1, sTB))
    a.e("s_add_u32 s%d, s%d, s%d" % (sT0, sT0, sT1))
    a.e("v_and_b32 v%d, 31, v%d" % (vT0, vLane))
    a.e("v_add_u32 v%d, s%d, v%d" % (vT0, sT0, vT0))
    a.e("v_lshrrev_b32 v%d, 5, v%d" % (vT1, vLane))
    a.e("v_lshlrev_b32 v%d, 4, v%d" % (vT1, vT1))
    a.e("v_lshl_add_u32 v%d, v%d, 10, v%d" % (vXo, vT0, vT1))
    a.e("s_lshr_b32 s%d, s%d, 1" % (sT0, sW))
    a.e("s_lshl_b32 s%d, s%d, 6" % (sT0, sT0))
    a.e("s_lshl_b32 s%d, s%d, 7" % (sT1, sNB))
    a.e("s_add_u32 s%d, s%d, s%d" % (sT0, sT0, sT1))
    a.e("v_add_u32 v%d, s%d, v%d" % (vXo, sT0, vXo))
    a.e("buffer_load_dwordx4 %s, v%d, s[%d:%d], 0 offen" % (vr(XR, 4), vXo, rX, rX + 3))
    a.e("buffer_load_dwordx4 %s, v%d, s[%d:%d], 0 offen offset:32" % (vr(XR + 4, 4), vXo, rX, rX + 3))
    a.e("s_barrier")
    a.e("v_lshlrev_b32 v%d, 4, v%d" % (vR, vLane))
    a.e("v_add_u32 v%d, s%d, v%d" % (vT0, sLB, vR))
    for i in range(32):
        a.e("ds_write_b128 v%d, %s offset:%d" % (vT0, vr(4 * i, 4), i * 1024))
    a.e("s_waitcnt lgkmcnt(0)")
    a.e("s_barrier")
    a.e("s_lshl_b32 s%d, s%d, 12" % (sT0, sW))
    a.e("v_add_u32 v%d, s%d, v%d" % (vR, sT0, vR))
    a.e("v_add_u32 v%d, 0x10000, v%d" % (vT4, vR))
    for part, base in ((0, 0), (1, 64)):
        for src in range(4):
            for i in range(4):
                a.e("ds_read_b128 %s, v%d offset:%d" % (vr(base + 16 * src + 4 * i, 4), vR if src < 2 else vT4, (src & 1) * 32768 + part * 16384 + i * 1024))
        a.e("s_waitcnt lgkmcnt(0)")
        for i in range(16):
            a.e("v_add_f32 v%d, v%d, v%d" % (base + i, base + i, base + 16 + i))
            a.e("v_add_f32 v%d, v%d, v%d" % (base + 32 + i, base + 32 + i, base + 48 + i))
        for i in range(16):
            a.e("v_add_f32 v%d, v%d, v%d" % (base + i, base + i, base + 32 + i))
    a.e("s_waitcnt vmcnt(0)")
    a.e("s_mov_b32 s%d, %s" % (sT2, f32(-math.log2(math.e))))
    for p in range(8):
        s0, s1, f0, f1 = 2 * p, 2 * p + 1, 64 + 2 * p, 64 + 2 * p + 1
        round_bf16_pair(a, s0, s1, s0, s1, vT0)
        round_bf16_pair(a, f0, f1, f0, f1, vT0)
        a.e("v_mul_f32 v%d, s%d, v%d" % (vT0, sT2, f0))
        a.e("v_mul_f32 v%d, s%d, v%d" % (vT1, sT2, f1))
        a.e("v_exp_f32 v%d, v%d" % (vT0, vT0))
        a.e("v_exp_f32 v%d, v%d" % (vT1, vT1))
        a.e("s_nop 0")
        a.e("v_add_f32 v%d, 1.0, v%d" % (vT0, vT0))
        a.e("v_add_f32 v%d, 1.0, v%d" % (vT1, vT1))
        a.e("v_rcp_f32 v%d, v%d" % (vT0, vT0))
        a.e("v_rcp_f32 v%d, v%d" % (vT1, vT1))
        a.e("s_nop 0")
        a.e("v_mul_f32 v%d, v%d, v%d" % (f0, f0, vT0))
        a.e("v_mul_f32 v%d, v%d, v%d" % (f1, f1, vT1))
        round_bf16_pair(a, f0, f1, f0, f1, vT0)
        a.e("v_mul_f32 v%d, v%d, v%d" % (s0, s0, f0))
        a.e("v_mul_f32 v%d, v%d, v%d" % (s1, s1, f1))
        round_bf16_pair(a, s0, s1, s0, s1, vT0)
        a.e("v_lshlrev_b32 v%d, 16, v%d" % (vT0, XR + p))
        a.e("v_and_b32 v%d, 0xffff0000, v%d" % (vT1, XR + p))
        a.e("v_add_f32 v%d, v%d, v%d" % (s0, s0, vT0))
        a.e("v_add_f32 v%d, v%d, v%d" % (s1, s1, vT1))
        a.e("v_cvt_pk_bf16_f32 v%d, v%d, v%d" % (XR + p, s0, s1))
    a.e("buffer_store_dwordx4 %s, v%d, s[%d:%d], 0 offen" % (vr(XR, 4), vXo, rOut, rOut + 3))
    a.e("buffer_store_dwordx4 %s, v%d, s[%d:%d], 0 offen offset:32" % (vr(XR + 4, 4), vXo, rOut, rOut + 3))
    a.label("L_outp_end")
    a.e("s_endpgm")
    return name, (NWG, 256, 131072), 192


def main():
    a = Asm()
    ks = []
    for g in (gen_ln, gen_ffn1, gen_attn, gen_out):
        a.pend = []
        ks.append(g(a))
    head = []
    for name, (nwg, blk, lds), _ in ks:
        head.append("; @launch kernel=%s grid=(%d,1,1) block=(%d,1,1) lds=%d" % (name, nwg, blk, lds))
    head.append('.amdgcn_target "amdgcn-amd-amdhsa--gfx950"')
    head.append(".text")
    tail = ['.section .rodata,"a"']
    for name, _, vg in ks:
        tail.append(".p2align 6")
        tail.append(kernel_desc(name, vg))
    open(OUT, "w").write("\n".join(head + a.lines + tail) + "\n")


if __name__ == "__main__":
    main()
```

```python
import math, struct, sys, os
P = lambda k, d: int(os.environ.get(k, d))

OUT = os.environ.get("GEN_OUT", "recurrent_scan__mha_block_cached__glu_gated_geglu__prompt.s")

S = 2048; D = 512; H = 32; DH = 128; DF = 1792
WS_XN = 0
WS_H = 0x200000
WS_O = 0x1000000
XN_BYTES = S * D * 2
H_BYTES = S * DF * 2
O_BYTES = S * H * DH * 2


def f32(x):
    return "0x%08x" % struct.unpack("<I", struct.pack("<f", x))[0]


class Asm:
    def __init__(self):
        self.lines = []
        self.pend = []
        self.nlabel = 0
        self.nolds = False

    def e(self, s):
        self.lines.append("    " + s)

    def c(self, s):
        self.lines.append("    ; " + s)

    def label(self, name):
        self.lines.append(name + ":")

    def raw(self, s):
        self.lines.append(s)

    def lds(self, text, tag):
        if P('X_NOLDS', 0) and self.nolds:
            return
        self.e(text)
        self.pend.append(tag)
        assert len(self.pend) <= 15, "too many outstanding lgkm ops"

    def wait_lds(self, tag):
        if tag not in self.pend:
            return
        idx = len(self.pend) - 1 - self.pend[::-1].index(tag)
        n = len(self.pend) - idx - 1
        self.e("s_waitcnt lgkmcnt(%d)" % n)
        self.pend = self.pend[idx + 1:]

    def wait_lds_all(self):
        if self.pend:
            self.e("s_waitcnt lgkmcnt(0)")
        self.pend = []


def vr(a, n):
    return "v[%d:%d]" % (a, a + n - 1)


def sr(a, n):
    return "s[%d:%d]" % (a, a + n - 1)


def make_srd(a, d, lo, hi, nbytes, add=0):
    if add:
        a.e("s_add_u32 s%d, s%d, 0x%x" % (d, lo, add))
        a.e("s_addc_u32 s%d, s%d, 0" % (d + 1, hi))
        a.e("s_and_b32 s%d, s%d, 0xffff" % (d + 1, d + 1))
    else:
        a.e("s_mov_b32 s%d, s%d" % (d, lo))
        a.e("s_and_b32 s%d, s%d, 0xffff" % (d + 1, hi))
    a.e("s_mov_b32 s%d, 0x%x" % (d + 2, nbytes))
    a.e("s_mov_b32 s%d, 0x00020000" % (d + 3))


def make_srd_s(a, d, lo, hi, nbytes, soff):
    a.e("s_add_u32 s%d, s%d, s%d" % (d, lo, soff))
    a.e("s_addc_u32 s%d, s%d, 0" % (d + 1, hi))
    a.e("s_and_b32 s%d, s%d, 0xffff" % (d + 1, d + 1))
    a.e("s_mov_b32 s%d, 0x%x" % (d + 2, nbytes))
    a.e("s_mov_b32 s%d, 0x00020000" % (d + 3))


def kernel_header(a, name):
    a.raw(".globl %s" % name)
    a.raw(".p2align 8")
    a.raw(".type %s,@function" % name)
    a.label(name)


def kernel_desc(name, vgpr, sgpr=102):
    acc = (vgpr + 3) // 4 * 4
    return """.amdhsa_kernel %s
  .amdhsa_next_free_vgpr %d
  .amdhsa_next_free_sgpr %d
  .amdhsa_accum_offset %d
  .amdhsa_group_segment_fixed_size 0
  .amdhsa_kernarg_size 96
  .amdhsa_user_sgpr_count 2
  .amdhsa_user_sgpr_kernarg_segment_ptr 1
  .amdhsa_system_sgpr_workgroup_id_x 1
.end_amdhsa_kernel""" % (name, vgpr, sgpr, acc)


def round_bf16_pair(a, d0, d1, s0, s1, tmp):
    a.e("v_cvt_pk_bf16_f32 v%d, v%d, v%d" % (tmp, s0, s1))
    a.e("v_lshlrev_b32 v%d, 16, v%d" % (d0, tmp))
    a.e("v_and_b32 v%d, 0xffff0000, v%d" % (d1, tmp))


def tr_lane_off(a, dst, vL, t0, t1):
    a.e("v_and_b32 v%d, 16, v%d" % (dst, vL))
    a.e("v_lshlrev_b32 v%d, 1, v%d" % (dst, dst))
    a.e("v_and_b32 v%d, 1, v%d" % (t0, vL))
    a.e("v_lshlrev_b32 v%d, 4, v%d" % (t0, t0))
    a.e("v_and_b32 v%d, 2, v%d" % (t1, vL))
    a.e("v_lshlrev_b32 v%d, 2, v%d" % (t1, t1))
    a.e("v_add3_u32 v%d, v%d, v%d, v%d" % (dst, dst, t0, t1))


def gen_ln(a):
    name = "lnorm_kernel"
    kernel_header(a, name)
    NWG = 512
    sX, sWS = 4, 6
    rX, rXN = 8, 12
    sT0, sT1, sW = 16, 17, 18
    a.e("s_cmp_ge_u32 s2, %d" % NWG)
    a.e("s_cbranch_scc1 L_ln_end")
    a.e("s_load_dwordx2 s[%d:%d], s[0:1], 0" % (sX, sX + 1))
    a.e("s_load_dwordx2 s[%d:%d], s[0:1], 88" % (sWS, sWS + 1))
    vLane, vT0, vT1, vOff, vSt, vSum, vMean, vR = 1, 2, 3, 4, 5, 6, 7, 8
    XP = 12
    XU = 16
    a.e("v_and_b32 v%d, 63, v0" % vLane)
    a.e("v_lshrrev_b32 v%d, 6, v0" % vT0)
    a.e("s_lshl_b32 s%d, s2, 2" % sT0)
    a.e("v_readfirstlane_b32 s%d, v%d" % (sW, vT0))
    a.e("s_waitcnt lgkmcnt(0)")
    make_srd(a, rX, sX, sX + 1, S * D * 2)
    make_srd(a, rXN, sWS, sWS + 1, XN_BYTES)
    a.e("s_add_u32 s%d, s%d, s%d" % (sT0, sT0, sW))
    a.e("s_lshl_b32 s%d, s%d, 10" % (sT1, sT0))
    a.e("v_lshlrev_b32 v%d, 4, v%d" % (vOff, vLane))
    a.e("buffer_load_dwordx4 %s, v%d, s[%d:%d], s%d offen" % (vr(XP, 4), vOff, rX, rX + 3, sT1))
    a.e("v_lshrrev_b32 v%d, 1, v%d" % (vT0, vLane))
    a.e("v_lshlrev_b32 v%d, 10, v%d" % (vT0, vT0))
    a.e("v_and_b32 v%d, 1, v%d" % (vT1, vLane))
    a.e("v_lshl_add_u32 v%d, v%d, 9, v%d" % (vSt, vT1, vT0))
    a.e("s_lshr_b32 s%d, s%d, 5" % (sT1, sT0))
    a.e("s_lshl_b32 s%d, s%d, 15" % (sT1, sT1))
    a.e("s_and_b32 s%d, s%d, 31" % (sT0, sT0))
    a.e("s_lshl_b32 s%d, s%d, 4" % (sT0, sT0))
    a.e("s_add_u32 s%d, s%d, s%d" % (sT1, sT1, sT0))
    a.e("v_add_u32 v%d, s%d, v%d" % (vSt, sT1, vSt))
    a.e("s_waitcnt vmcnt(0)")
    for i in range(4):
        a.e("v_lshlrev_b32 v%d, 16, v%d" % (XU + 2 * i, XP + i))
        a.e("v_and_b32 v%d, 0xffff0000, v%d" % (XU + 2 * i + 1, XP + i))

    def reduce(v):
        for msk in (1, 2, 4, 8, 16):
            a.e("ds_swizzle_b32 v%d, v%d offset:0x%x" % (vT0, v, (msk << 10) | 0x1f))
            a.e("s_waitcnt lgkmcnt(0)")
            a.e("v_add_f32 v%d, v%d, v%d" % (v, v, vT0))
        a.e("v_mov_b32 v%d, v%d" % (vT0, v))
        a.e("s_nop 1")
        a.e("v_permlane32_swap_b32 v%d, v%d" % (v, vT0))
        a.e("s_nop 1")
        a.e("v_add_f32 v%d, v%d, v%d" % (v, v, vT0))

    a.e("v_add_f32 v%d, v%d, v%d" % (vSum, XU, XU + 1))
    for i in range(2, 8):
        a.e("v_add_f32 v%d, v%d, v%d" % (vSum, vSum, XU + i))
    reduce(vSum)
    a.e("v_mul_f32 v%d, %s, v%d" % (vMean, f32(1.0 / D), vSum))
    a.e("v_mov_b32 v%d, 0" % vSum)
    for i in range(8):
        a.e("v_sub_f32 v%d, v%d, v%d" % (vT1, XU + i, vMean))
        a.e("v_fmac_f32 v%d, v%d, v%d" % (vSum, vT1, vT1))
    reduce(vSum)
    a.e("v_mul_f32 v%d, %s, v%d" % (vSum, f32(1.0 / D), vSum))
    round_bf16_pair(a, vMean, vSum, vMean, vSum, vT0)
    a.e("v_add_f32 v%d, %s, v%d" % (vSum, f32(1e-5), vSum))
    round_bf16_pair(a, vSum, vT1, vSum, vSum, vT0)
    a.e("v_sqrt_f32 v%d, v%d" % (vSum, vSum))
    a.e("s_nop 0")
    round_bf16_pair(a, vSum, vT1, vSum, vSum, vT0)
    a.e("v_rcp_f32 v%d, v%d" % (vR, vSum))
    for i in range(4):
        a.e("v_sub_f32 v%d, v%d, v%d" % (XU + 2 * i, XU + 2 * i, vMean))
        a.e("v_sub_f32 v%d, v%d, v%d" % (XU + 2 * i + 1, XU + 2 * i + 1, vMean))
        round_bf16_pair(a, XU + 2 * i, XU + 2 * i + 1, XU + 2 * i, XU + 2 * i + 1, vT0)
        a.e("v_mul_f32 v%d, v%d, v%d" % (XU + 2 * i, XU + 2 * i, vR))
        a.e("v_mul_f32 v%d, v%d, v%d" % (XU + 2 * i + 1, XU + 2 * i + 1, vR))
        a.e("v_cvt_pk_bf16_f32 v%d, v%d, v%d" % (XP + i, XU + 2 * i, XU + 2 * i + 1))
    a.e("buffer_store_dwordx4 %s, v%d, s[%d:%d], 0 offen" % (vr(XP, 4), vSt, rXN, rXN + 3))
    a.label("L_ln_end")
    a.e("s_endpgm")
    return name, (NWG, 256, 0), 32


def load_xn_frags(a, X, vL16, rXN, sBase, sTmp):
    for g in range(8):
        a.e("s_add_u32 s%d, s%d, %d" % (sTmp, sBase, g * 4096))
        for i in range(4):
            ks = 4 * g + i
            a.e("buffer_load_dwordx4 %s, v%d, s[%d:%d], s%d offen offset:%d" % (vr(X + 4 * ks, 4), vL16, rXN, rXN + 3, sTmp, i * 1024))


def gen_ffn1(a):
    name = "ffn1_kernel"
    kernel_header(a, name)
    NWG = 8 * 28
    sX, sWG, sWU, sWS = 4, 6, 8, 10
    rX, rWG, rWU, rXN, rH = 12, 16, 20, 24, 28
    sRB, sCB, sW, sT0, sT1, sT2 = 32, 33, 34, 35, 36, 37
    sK1, sK2, sXB, sHB = 38, 39, 40, 41
    a.e("s_cmp_ge_u32 s2, %d" % NWG)
    a.e("s_cbranch_scc1 L_ffn1_end")
    a.e("s_load_dwordx2 s[%d:%d], s[0:1], 0" % (sX, sX + 1))
    a.e("s_load_dwordx2 s[%d:%d], s[0:1], 48" % (sWG, sWG + 1))
    a.e("s_load_dwordx2 s[%d:%d], s[0:1], 56" % (sWU, sWU + 1))
    a.e("s_load_dwordx2 s[%d:%d], s[0:1], 88" % (sWS, sWS + 1))
    X = 0
    ACC = 128
    FR = 192
    vLane, vT0, vT1, vT2, vT3, vT4 = 232, 233, 234, 235, 236, 237
    vA = 238
    vXo, vDW, vSum, vSq, vMean, vRinv = 242, 243, 244, 245, 246, 247
    vHo = 248
    a.e("v_and_b32 v%d, 63, v0" % vLane)
    a.e("v_lshrrev_b32 v%d, 6, v0" % vT0)
    a.e("s_and_b32 s%d, s2, 7" % sRB)
    a.e("s_lshr_b32 s%d, s2, 3" % sCB)
    a.e("v_readfirstlane_b32 s%d, v%d" % (sW, vT0))
    a.e("s_waitcnt lgkmcnt(0)")
    make_srd(a, rX, sX, sX + 1, S * D * 2)
    make_srd(a, rWG, sWG, sWG + 1, D * DF * 2)
    make_srd(a, rWU, sWU, sWU + 1, D * DF * 2)
    make_srd(a, rXN, sWS, sWS + 1, XN_BYTES, WS_XN) if WS_XN else make_srd(a, rXN, sWS, sWS + 1, XN_BYTES)
    make_srd(a, rH, sWS, sWS + 1, H_BYTES, WS_H)
    a.e("v_lshrrev_b32 v%d, 3, v%d" % (vT0, vLane))
    a.e("s_movk_i32 s%d, 3584" % sT0)
    a.e("v_mul_lo_u32 v%d, v%d, s%d" % (vT0, vT0, sT0))
    a.e("v_lshrrev_b32 v%d, 2, v%d" % (vT1, vLane))
    a.e("v_and_b32 v%d, 4, v%d" % (vT1, vT1))
    a.e("v_and_b32 v%d, 7, v%d" % (vT2, vLane))
    a.e("v_xor_b32 v%d, v%d, v%d" % (vT1, vT1, vT2))
    a.e("v_lshl_add_u32 v%d, v%d, 4, v%d" % (vDW, vT1, vT0))
    a.e("v_lshlrev_b32 v%d, 4, v%d" % (vXo, vLane))
    a.e("s_lshl_b32 s%d, s%d, 3" % (sK2, sRB))
    a.e("s_add_u32 s%d, s%d, s%d" % (sK2, sK2, sW))
    a.e("s_lshl_b32 s%d, s%d, 15" % (sXB, sK2))
    a.e("s_mul_i32 s%d, s%d, %d" % (sT0, sW, 16 * 3584))
    a.e("s_lshl_b32 s%d, s%d, 7" % (sT1, sCB))
    a.e("s_add_u32 s%d, s%d, s%d" % (sT0, sT0, sT1))
    a.e("s_lshl_b32 s%d, s%d, 11" % (sT1, sW))
    for q in range(4):
        for i in range(2):
            a.e("s_add_u32 s%d, s%d, %d" % (sT2, sT0, (128 * q + 8 * i) * 3584))
            a.e("s_add_u32 m0, s%d, %d" % (sT1, q * 16384 + i * 1024))
            a.e("s_nop 0")
            a.e("buffer_load_dwordx4 v%d, s[%d:%d], s%d offen lds" % (vDW, rWG, rWG + 3, sT2))
            a.e("s_add_u32 m0, s%d, %d" % (sT1, 65536 + q * 16384 + i * 1024))
            a.e("s_nop 0")
            a.e("buffer_load_dwordx4 v%d, s[%d:%d], s%d offen lds" % (vDW, rWU, rWU + 3, sT2))
        for g in range(2):
            a.e("s_add_u32 s%d, s%d, %d" % (sT2, sXB, (2 * q + g) * 4096))
            for i in range(4):
                ks = 8 * q + 4 * g + i
                a.e("buffer_load_dwordx4 %s, v%d, s[%d:%d], s%d offen offset:%d" % (vr(X + 4 * ks, 4), vXo, rXN, rXN + 3, sT2, i * 1024))
    a.e("s_mul_i32 s%d, s%d, %d" % (sHB, sK2, 112 * 1024))
    a.e("s_lshl_b32 s%d, s%d, 12" % (sT2, sCB))
    a.e("s_add_u32 s%d, s%d, s%d" % (sHB, sHB, sT2))
    tr_lane_off(a, vT2, vLane, vT0, vT1)
    a.e("v_lshrrev_b32 v%d, 5, v%d" % (vT0, vLane))
    a.e("v_lshlrev_b32 v%d, 3, v%d" % (vT0, vT0))
    a.e("v_bfe_u32 v%d, v%d, 2, 2" % (vT1, vLane))
    a.e("v_add_u32 v%d, v%d, v%d" % (vT0, vT0, vT1))
    a.e("v_lshl_add_u32 v%d, v%d, 7, v%d" % (vT2, vT0, vT2))
    a.e("v_lshrrev_b32 v%d, 1, v%d" % (vT1, vT1))
    a.e("v_lshlrev_b32 v%d, 6, v%d" % (vT1, vT1))
    a.e("v_add_u32 v%d, v%d, v%d" % (vA + 0, vT2, vT1))
    a.e("v_xor_b32 v%d, 64, v%d" % (vT1, vT1))
    a.e("v_add_u32 v%d, v%d, v%d" % (vA + 1, vT2, vT1))
    a.e("v_add_u32 v%d, 0x10000, v%d" % (vA + 2, vA + 0))
    a.e("v_add_u32 v%d, 0x10000, v%d" % (vA + 3, vA + 1))
    NFR = 10
    PD = 6

    def frag(n):
        return FR + 4 * (n % NFR)

    for qt in range(4):
        a.e("s_waitcnt vmcnt(%d)" % (12 * (3 - qt)))
        a.e("s_barrier")
        seq = [(ks, q) for ks in range(8 * qt, 8 * qt + 8) for q in range(4)]

        def issue(n):
            ks, q = seq[n]
            for t in range(2):
                a.lds("ds_read_b64_tr_b16 %s, v%d offset:%d" % (vr(frag(n) + 2 * t, 2), vA + q, (16 * ks + 4 * t) * 128), n)

        for n in range(PD):
            issue(n)
        for n in range(len(seq)):
            if n + PD < len(seq):
                issue(n + PD)
            ks, q = seq[n]
            a.wait_lds(n)
            acc = ACC + 16 * q
            a.e("v_mfma_f32_32x32x16_bf16 %s, %s, %s, %s" % (vr(acc, 16), vr(frag(n), 4), vr(X + 4 * ks, 4), "0" if ks == 0 else vr(acc, 16)))
    a.e("s_nop 15")
    a.e("s_nop 3")
    KK = -2.0 * math.sqrt(2.0 / math.pi) * math.log2(math.e)
    a.e("s_mov_b32 s%d, %s" % (sK1, f32(KK * 0.044715)))
    a.e("v_mov_b32 v%d, %s" % (vT4, f32(KK)))
    for cs in range(2):
        G = ACC + 16 * cs
        U = ACC + 32 + 16 * cs
        for p in range(8):
            g0, g1, u0, u1 = G + 2 * p, G + 2 * p + 1, U + 2 * p, U + 2 * p + 1
            round_bf16_pair(a, g0, g1, g0, g1, vT0)
            round_bf16_pair(a, u0, u1, u0, u1, vT0)
            for g, t in ((g0, vT0), (g1, vT1)):
                a.e("v_mul_f32 v%d, v%d, v%d" % (t, g, g))
                a.e("v_fma_f32 v%d, v%d, s%d, v%d" % (t, t, sK1, vT4))
                a.e("v_mul_f32 v%d, v%d, v%d" % (t, t, g))
            a.e("v_exp_f32 v%d, v%d" % (vT0, vT0))
            a.e("v_exp_f32 v%d, v%d" % (vT1, vT1))
            a.e("s_nop 0")
            a.e("v_add_f32 v%d, 1.0, v%d" % (vT0, vT0))
            a.e("v_add_f32 v%d, 1.0, v%d" % (vT1, vT1))
            a.e("v_rcp_f32 v%d, v%d" % (vT0, vT0))
            a.e("v_rcp_f32 v%d, v%d" % (vT1, vT1))
            a.e("s_nop 0")
            a.e("v_mul_f32 v%d, v%d, v%d" % (g0, g0, vT0))
            a.e("v_mul_f32 v%d, v%d, v%d" % (g1, g1, vT1))
            round_bf16_pair(a, g0, g1, g0, g1, vT0)
            a.e("v_mul_f32 v%d, v%d, v%d" % (g0, g0, u0))
            a.e("v_mul_f32 v%d, v%d, v%d" % (g1, g1, u1))
            a.e("v_cvt_pk_bf16_f32 v%d, v%d, v%d" % (G + p, g0, g1))
        a.e("buffer_store_dwordx4 %s, v%d, s[%d:%d], s%d offen offset:%d" % (vr(G, 4), vXo, rH, rH + 3, sHB, cs * 2048))
        a.e("buffer_store_dwordx4 %s, v%d, s[%d:%d], s%d offen offset:%d" % (vr(G + 4, 4), vXo, rH, rH + 3, sHB, cs * 2048 + 1024))
    a.label("L_ffn1_end")
    a.e("s_endpgm")
    return name, (NWG, 512, 131072), 256


def gen_attn(a):
    name = "attn_kernel"
    kernel_header(a, name)
    NWG = 256
    sK, sV, sWQ, sWS = 4, 6, 8, 10
    rK, rV, rWQ, rXN, rO = 12, 16, 20, 24, 28
    sHead, sQB, sW, sT0, sT1, sT2 = 32, 33, 34, 35, 36, 37
    sC, sJ, sKoff, sVoff, sM0K, sM0V = 38, 39, 40, 41, 42, 43
    sRBk, sXB, sOB, sT3 = 44, 45, 46, 47
    a.e("s_cmp_ge_u32 s2, %d" % NWG)
    a.e("s_cbranch_scc1 L_attn_end")
    a.e("s_load_dwordx2 s[%d:%d], s[0:1], 8" % (sK, sK + 1))
    a.e("s_load_dwordx2 s[%d:%d], s[0:1], 16" % (sV, sV + 1))
    a.e("s_load_dwordx2 s[%d:%d], s[0:1], 24" % (sWQ, sWQ + 1))
    a.e("s_load_dwordx2 s[%d:%d], s[0:1], 88" % (sWS, sWS + 1))
    O = 0
    SB = [64, 96]
    Q = 128
    FR = 160
    NFR = P('A_NFR', 8)
    X = 0
    QACC = 160
    PFR = 192
    vKa = 224
    vVa = 232
    vDK0, vDK1, vDV = 236, 237, 238
    vM, vM8, vL0, vL1 = 239, 240, 241, 242
    vT0, vT1, vT2, vT3, vT4 = 243, 244, 245, 246, 247
    vLane, vOo = 248, 249
    vWa = 250
    vDW = 254
    LDS_K = 98304
    LDS_V = 0
    a.e("v_and_b32 v%d, 63, v0" % vLane)
    a.e("v_lshrrev_b32 v%d, 6, v0" % vT0)
    a.e("s_lshr_b32 s%d, s2, 6" % sHead)
    a.e("s_lshl_b32 s%d, s%d, 3" % (sHead, sHead))
    a.e("s_and_b32 s%d, s2, 7" % sT0)
    a.e("s_or_b32 s%d, s%d, s%d" % (sHead, sHead, sT0))
    a.e("s_bfe_u32 s%d, s2, 0x30003" % sQB)
    a.e("v_readfirstlane_b32 s%d, v%d" % (sW, vT0))
    a.e("s_waitcnt lgkmcnt(0)")
    a.e("s_lshl_b32 s%d, s%d, 19" % (sT0, sHead))
    make_srd_s(a, rK, sK, sK + 1, S * DH * 2, sT0)
    make_srd_s(a, rV, sV, sV + 1, S * DH * 2, sT0)
    make_srd(a, rWQ, sWQ, sWQ + 1, D * H * DH * 2)
    make_srd(a, rXN, sWS, sWS + 1, XN_BYTES)
    make_srd(a, rO, sWS, sWS + 1, O_BYTES, WS_O)
    STAMP = P('A_STAMP', 0)
    stamp_n = [0]
    def stamp():
        if not STAMP:
            return
        a.e("s_memtime s[%d:%d]" % (60 + 2 * stamp_n[0], 61 + 2 * stamp_n[0]))
        stamp_n[0] += 1
    stamp()
    a.e("v_lshrrev_b32 v%d, 4, v%d" % (vT0, vLane))
    a.e("v_and_b32 v%d, 15, v%d" % (vT1, vLane))
    a.e("v_lshlrev_b32 v%d, 2, v%d" % (vT2, vT0))
    a.e("v_xor_b32 v%d, v%d, v%d" % (vT2, vT2, vT1))
    a.e("v_lshlrev_b32 v%d, 4, v%d" % (vT2, vT2))
    a.e("v_lshl_add_u32 v%d, v%d, 8, v%d" % (vDV, vT0, vT2))
    a.e("v_lshl_add_u32 v%d, v%d, 13, v%d" % (vDW, vT0, vT2))
    a.e("s_and_b32 s%d, s%d, 1" % (sT0, sW))
    a.e("s_lshl_b32 s%d, s%d, 3" % (sT0, sT0))
    a.e("v_add_u32 v%d, s%d, v%d" % (vT2, sT0, vT0))
    a.e("v_xor_b32 v%d, v%d, v%d" % (vT3, vT2, vT1))
    a.e("v_lshlrev_b32 v%d, 4, v%d" % (vT3, vT3))
    a.e("v_lshl_add_u32 v%d, v%d, 8, v%d" % (vDK0, vT0, vT3))
    a.e("v_add_u32 v%d, 4, v%d" % (vT2, vT2))
    a.e("v_xor_b32 v%d, v%d, v%d" % (vT3, vT2, vT1))
    a.e("v_lshlrev_b32 v%d, 4, v%d" % (vT3, vT3))
    a.e("v_lshl_add_u32 v%d, v%d, 8, v%d" % (vDK1, vT0, vT3))
    a.e("s_lshl_b32 s%d, s%d, 11" % (sT1, sW))
    a.e("s_add_u32 s%d, s%d, %d" % (sM0K, sT1, LDS_K))
    a.e("s_add_u32 s%d, s%d, %d" % (sM0V, sT1, LDS_V))

    def dma_k(slot, soff):
        a.e("s_add_u32 m0, s%d, %d" % (sM0K, slot * 16384))
        a.e("s_nop 0")
        a.e("buffer_load_dwordx4 v%d, s[%d:%d], s%d offen lds" % (vDK0, rK, rK + 3, soff))
        a.e("buffer_load_dwordx4 v%d, s[%d:%d], s%d offen offset:1024 lds" % (vDK1, rK, rK + 3, soff))

    def dma_v(slot, soff):
        a.e("s_add_u32 m0, s%d, %d" % (sM0V, slot * 16384))
        a.e("s_nop 0")
        a.e("buffer_load_dwordx4 v%d, s[%d:%d], s%d offen lds" % (vDV, rV, rV + 3, soff))
        a.e("buffer_load_dwordx4 v%d, s[%d:%d], s%d offen offset:1024 lds" % (vDV, rV, rV + 3, soff))

    a.e("s_lshl_b32 s%d, s%d, 3" % (sRBk, sQB))
    a.e("s_add_u32 s%d, s%d, s%d" % (sRBk, sRBk, sW))
    a.e("s_lshl_b32 s%d, s%d, 15" % (sXB, sRBk))
    a.e("v_lshlrev_b32 v%d, 4, v%d" % (vOo, vLane))
    a.e("s_lshl_b32 s%d, s%d, 17" % (sT0, sW))
    a.e("s_lshl_b32 s%d, s%d, 8" % (sT2, sHead))
    a.e("s_add_u32 s%d, s%d, s%d" % (sT0, sT0, sT2))
    a.e("s_lshl_b32 s%d, s%d, 12" % (sT3, sW))
    for q in range(4):
        for i in range(4):
            a.e("s_add_u32 s%d, s%d, %d" % (sT2, sT0, (128 * q + 4 * i) * 8192))
            a.e("s_add_u32 m0, s%d, %d" % (sT3, q * 32768 + i * 1024))
            a.e("s_nop 0")
            a.e("buffer_load_dwordx4 v%d, s[%d:%d], s%d offen lds" % (vDW, rWQ, rWQ + 3, sT2))
        for g in range(2):
            a.e("s_add_u32 s%d, s%d, %d" % (sT2, sXB, (2 * q + g) * 4096))
            for i in range(4):
                ks = 8 * q + 4 * g + i
                a.e("buffer_load_dwordx4 %s, v%d, s[%d:%d], s%d offen offset:%d" % (vr(X + 4 * ks, 4), vOo, rXN, rXN + 3, sT2, i * 1024))
    a.e("s_mov_b32 s%d, s%d" % (sKoff, sT1))
    dma_k(2, sKoff)
    a.e("s_add_u32 s%d, s%d, 16384" % (sKoff, sKoff))
    dma_k(3, sKoff)
    a.e("s_add_u32 s%d, s%d, 16384" % (sKoff, sKoff))
    a.e("s_mov_b32 s%d, s%d" % (sVoff, sT1))
    a.e("s_lshl_b32 s%d, s%d, 18" % (sOB, sRBk))
    a.e("s_lshl_b32 s%d, s%d, 13" % (sT2, sHead))
    a.e("s_add_u32 s%d, s%d, s%d" % (sOB, sOB, sT2))
    tr_lane_off(a, vT2, vLane, vT0, vT1)
    a.e("v_bfe_u32 v%d, v%d, 2, 2" % (vT1, vLane))
    a.e("v_lshrrev_b32 v%d, 5, v%d" % (vT0, vLane))
    a.e("v_lshl_add_u32 v%d, v%d, 3, v%d" % (vT3, vT0, vT1))
    a.e("v_lshl_add_u32 v%d, v%d, 8, v%d" % (vT3, vT3, vT2))
    a.e("v_lshl_add_u32 v%d, v%d, 2, v%d" % (vT4, vT0, vT1))
    a.e("v_lshl_add_u32 v%d, v%d, 8, v%d" % (vT4, vT4, vT2))
    for db in range(4):
        a.e("v_xor_b32 v%d, %d, v%d" % (vT2, db, vT1))
        a.e("v_lshlrev_b32 v%d, 6, v%d" % (vT2, vT2))
        a.e("v_add_u32 v%d, v%d, v%d" % (vWa + db, vT3, vT2))
        if LDS_V:
            a.e("v_add_u32 v%d, %d, v%d" % (vT2, LDS_V, vT2))
        a.e("v_add_u32 v%d, v%d, v%d" % (vVa + db, vT4, vT2))
    a.e("v_and_b32 v%d, 31, v%d" % (vT1, vLane))
    a.e("v_and_b32 v%d, 15, v%d" % (vT2, vLane))
    a.e("v_xor_b32 v%d, v%d, v%d" % (vT2, vT2, vT0))
    a.e("v_lshlrev_b32 v%d, 8, v%d" % (vT1, vT1))
    a.e("v_add_u32 v%d, 0x%x, v%d" % (vT1, LDS_K, vT1))
    for ks in range(8):
        a.e("v_xor_b32 v%d, %d, v%d" % (vT3, 2 * ks, vT2))
        a.e("v_lshl_add_u32 v%d, v%d, 4, v%d" % (vKa + ks, vT3, vT1))
    a.e("s_mov_b32 s%d, %s" % (sC, f32(math.log2(math.e) / math.sqrt(DH))))
    stamp()
    QACC = 160
    PFR = 128
    NP = 8
    PDQ = 5
    pctr = [0]
    for qt in range(4):
        a.e("s_waitcnt vmcnt(%d)" % (40, 28, 20, 8)[qt])
        a.e("s_barrier")
        if qt == 1:
            for t in range(2):
                dma_v(t, sVoff)
                a.e("s_add_u32 s%d, s%d, 16384" % (sVoff, sVoff))
        if qt == 2:
            for db in range(4):
                a.e("v_add_u32 v%d, 0x10000, v%d" % (vWa + db, vWa + db))
        seq = [(ks, db) for ks in range(8 * qt, 8 * qt + 8) for db in range(4)]
        base = pctr[0]

        def pfrag(n):
            return PFR + 4 * ((base + n) % NP)

        def pissue(n):
            ks, db = seq[n]
            for t in range(2):
                off = ((16 * ks + 4 * t) * 256) & 0xffff
                a.lds("ds_read_b64_tr_b16 %s, v%d offset:%d" % (vr(pfrag(n) + 2 * t, 2), vWa + db, off), ("q", base + n))

        for n in range(PDQ):
            pissue(n)
        for n in range(len(seq)):
            if n + PDQ < len(seq):
                pissue(n + PDQ)
            ks, db = seq[n]
            a.wait_lds(("q", base + n))
            acc = QACC + 16 * db
            a.e("v_mfma_f32_32x32x16_bf16 %s, %s, %s, %s" % (vr(acc, 16), vr(pfrag(n), 4), vr(X + 4 * ks, 4), "0" if ks == 0 else vr(acc, 16)))
        pctr[0] += len(seq)
    a.e("s_nop 15")
    a.e("s_nop 3")
    for db in range(4):
        for p in range(8):
            a.e("v_mul_f32 v%d, s%d, v%d" % (QACC + 16 * db + 2 * p, sC, QACC + 16 * db + 2 * p))
            a.e("v_mul_f32 v%d, s%d, v%d" % (QACC + 16 * db + 2 * p + 1, sC, QACC + 16 * db + 2 * p + 1))
            a.e("v_cvt_pk_bf16_f32 v%d, v%d, v%d" % (Q + 8 * db + p, QACC + 16 * db + 2 * p, QACC + 16 * db + 2 * p + 1))
    stamp()
    a.e("s_waitcnt vmcnt(0)")
    a.e("s_barrier")
    dma_k(0, sKoff)
    a.e("s_add_u32 s%d, s%d, 16384" % (sKoff, sKoff))
    a.e("s_add_u32 m0, s%d, %d" % (sM0K, 1 * 16384))
    a.e("s_nop 0")
    a.e("buffer_load_dwordx4 v%d, s[%d:%d], s%d offen lds" % (vDK0, rK, rK + 3, sKoff))
    for i in range(64):
        a.e("v_mov_b32 v%d, 0" % (O + i))
    NEGM = 192
    for i in range(16):
        a.e("v_mov_b32 v%d, 0" % (NEGM + i))
    a.e("v_mov_b32 v%d, 0" % vL0)
    a.e("v_mov_b32 v%d, 0" % vL1)

    fr_ctr = [0]

    def kread(kslot, m):
        kb, ks = m >> 3, m & 7
        f = FR + 4 * (fr_ctr[0] % NFR)
        tag = ("f", fr_ctr[0])
        fr_ctr[0] += 1
        a.lds("ds_read_b128 %s, v%d offset:%d" % (vr(f, 4), vKa + ks, kslot * 16384 + kb * 8192), tag)
        return (f, tag)

    def vread(vslot, m):
        s_, db = m >> 2, m & 3
        f = FR + 4 * (fr_ctr[0] % NFR)
        tag = ("f", fr_ctr[0])
        fr_ctr[0] += 1
        for t in range(2):
            a.lds("ds_read_b64_tr_b16 %s, v%d offset:%d" % (vr(f + 2 * t, 2), vVa + db, vslot * 16384 + (16 * s_ + 8 * t) * 256), tag)
        return (f, tag)

    def softmax_ops(cur):
        ops = []
        for g in range(8):
            b = cur + 4 * g
            for i in range(4):
                ops.append("v_exp_f32 v%d, v%d" % (b + i, b + i))
            for i in range(4):
                l = vL0 if i % 2 == 0 else vL1
                ops.append("v_add_f32 v%d, v%d, v%d" % (l, l, b + i))
            ops.append("v_cvt_pk_bf16_f32 v%d, v%d, v%d" % (cur + 2 * g, b, b + 1))
            ops.append("v_cvt_pk_bf16_f32 v%d, v%d, v%d" % (cur + 2 * g + 1, b + 2, b + 3))
        return ops

    def max_ops(nxt):
        ops = []
        ops.append("v_max3_f32 v%d, v%d, v%d, v%d" % (vT0, nxt + 0, nxt + 1, nxt + 2))
        ops.append("v_max3_f32 v%d, v%d, v%d, v%d" % (vT1, nxt + 16, nxt + 17, nxt + 18))
        for i in range(3, 15, 2):
            ops.append("v_max3_f32 v%d, v%d, v%d, v%d" % (vT0, vT0, nxt + i, nxt + i + 1))
            ops.append("v_max3_f32 v%d, v%d, v%d, v%d" % (vT1, vT1, nxt + 16 + i, nxt + 16 + i + 1))
        ops.append("v_max3_f32 v%d, v%d, v%d, v%d" % (vT0, vT0, nxt + 15, nxt + 31))
        ops.append("v_max_f32 v%d, v%d, v%d" % (vT0, vT0, vT1))
        ops.append("v_mov_b32 v%d, v%d" % (vT1, vT0))
        ops.append("s_nop 1")
        ops.append("v_permlane32_swap_b32 v%d, v%d" % (vT0, vT1))
        ops.append("s_nop 1")
        ops.append("v_max_f32 v%d, v%d, v%d" % (vT0, vT0, vT1))
        return ops

    rescale_sites = []

    def rescale_body(buf, first):
        if not first:
            a.e("v_max_f32 v%d, 0, v%d" % (vT0, vT0))
        a.e("v_sub_f32 v%d, 0, v%d" % (vT2, vT0))
        a.e("v_exp_f32 v%d, v%d" % (vT2, vT2))
        a.e("v_sub_f32 v%d, v%d, v%d" % (NEGM, NEGM, vT0))
        for i in range(1, 16):
            a.e("v_mov_b32 v%d, v%d" % (NEGM + i, NEGM))
        for i in range(32):
            a.e("v_sub_f32 v%d, v%d, v%d" % (buf + i, buf + i, vT0))
        if not first:
            for i in range(64):
                a.e("v_mul_f32 v%d, v%d, v%d" % (O + i, O + i, vT2))
            a.e("v_mul_f32 v%d, v%d, v%d" % (vL0, vL0, vT2))
            a.e("v_mul_f32 v%d, v%d, v%d" % (vL1, vL1, vT2))
        a.e("s_nop 1")

    def rescale_check(buf):
        n = a.nlabel
        a.nlabel += 1
        a.e("v_cmp_lt_f32 vcc, %s, v%d" % (f32(float(P('A_T', 48))), vT0))
        a.e("s_cbranch_vccnz L_resc_%d" % n)
        a.label("L_resc_ret_%d" % n)
        rescale_sites.append((n, buf))

    PD = P('A_PD', 4)
    q = [kread(2, m) for m in range(PD)]
    for m in range(16):
        if m + PD < 16:
            q.append(kread(2, m + PD))
        f, tag = q[m]
        a.wait_lds(tag)
        kb, ks = m >> 3, m & 7
        acc = SB[0] + 16 * kb
        a.e("v_mfma_f32_32x32x16_bf16 %s, %s, %s, %s" % (vr(acc, 16), vr(f, 4), vr(Q + 4 * ks, 4), "0" if ks == 0 else vr(acc, 16)))
    a.e("s_nop 15")
    a.e("s_nop 3")
    for op in max_ops(SB[0]):
        a.e(op)
    rescale_body(SB[0], True)
    carry = [kread(3, m) for m in range(PD)]
    a.e("s_mov_b32 s%d, 0" % sJ)
    stamp()
    a.nolds = True
    a.label("L_attn_loop")
    UNR = 4
    for u in range(UNR):
        cur, nxt = SB[u & 1], SB[(u + 1) & 1]
        kslot = (u + 1 + 2) & 3
        kslot_n = (u + 2 + 2) & 3
        vslot = u & 3
        sm = softmax_ops(cur)
        mx = max_ops(nxt)
        fill = [[] for _ in range(32)]
        CE = P('A_CE', 16)
        cost = lambda op: CE if op.startswith('v_exp') else (2 if op.startswith('s_nop') else 4)
        NS = P('A_NS', 27)
        tot = sum(cost(o) for o in sm)
        cum = 0
        for op in sm:
            fill[min(int((cum + cost(op) / 2) * NS / tot), NS - 1)].append(op)
            cum += cost(op)
        tot = sum(cost(o) for o in mx)
        cum = 0
        for op in mx:
            fill[min(NS + int((cum + cost(op) / 2) * (32 - NS) / tot), 31)].append(op)
            cum += cost(op)
        for t in range(32):
            for op in fill[t]:
                if op.startswith('v_cvt'):
                    dreg = int(op.split()[1].strip(',')[1:]) - cur
                    assert t <= 16 + 4 * (dreg // 4) - 1, (t, op)
        frags = list(carry)
        carry = []
        dpos = {P('A_D0', 1): 1, P('A_D1', 7): 2, P('A_D2', 13): 3}
        for m in range(32):
            mm = m + PD
            if mm < 16:
                frags.append(kread(kslot, mm))
            elif mm < 32:
                frags.append(vread(vslot, mm - 16))
            else:
                carry.append(kread(kslot_n, mm - 32))
            f, tag = frags[m]
            a.wait_lds(tag)
            if m < 16:
                kb, ks = m >> 3, m & 7
                acc = nxt + 16 * kb
                a.e("v_mfma_f32_32x32x16_bf16 %s, %s, %s, %s" % (vr(acc, 16), vr(f, 4), vr(Q + 4 * ks, 4), vr(NEGM, 16) if ks == 0 else vr(acc, 16)))
            else:
                s_, db = (m - 16) >> 2, (m - 16) & 3
                acc = O + 16 * db
                a.e("v_mfma_f32_32x32x16_bf16 %s, %s, %s, %s" % (vr(acc, 16), vr(f, 4), vr(cur + 4 * s_, 4), vr(acc, 16)))
            for op in fill[m]:
                if P('X_NOVALU', 0) and not op.startswith('s_'):
                    continue
                if P('X_NOEXP', 0) and op.startswith('v_exp'):
                    continue
                a.e(op)
            if m in dpos and not P('X_NODMA', 0):
                pc = dpos[m]
                if pc == 1:
                    a.e("buffer_load_dwordx4 v%d, s[%d:%d], s%d offen offset:1024 lds" % (vDK1, rK, rK + 3, sKoff))
                    a.e("s_add_u32 s%d, s%d, 16384" % (sKoff, sKoff))
                elif pc == 2:
                    a.e("s_add_u32 m0, s%d, %d" % (sM0V, ((u + 2) & 3) * 16384))
                    a.e("s_nop 0")
                    a.e("buffer_load_dwordx4 v%d, s[%d:%d], s%d offen lds" % (vDV, rV, rV + 3, sVoff))
                else:
                    a.e("buffer_load_dwordx4 v%d, s[%d:%d], s%d offen offset:1024 lds" % (vDV, rV, rV + 3, sVoff))
                    a.e("s_add_u32 s%d, s%d, 16384" % (sVoff, sVoff))
            if m == 32 - PD - 1:
                if not P('X_NOBAR2', 0):
                    a.e("s_waitcnt vmcnt(4)")
                    a.e("s_barrier")
            if m == 32 - PD + 1 and not P('X_NODMA', 0):
                a.e("s_add_u32 m0, s%d, %d" % (sM0K, ((u + 4 + 2) & 3) * 16384))
                a.e("s_nop 0")
                a.e("buffer_load_dwordx4 v%d, s[%d:%d], s%d offen lds" % (vDK0, rK, rK + 3, sKoff))
        if u == UNR - 1:
            a.e("s_cmp_eq_u32 s%d, %d" % (sJ, 32 - UNR))
            a.e("s_cbranch_scc1 L_attn_done")
        rescale_check(nxt)
    a.e("s_add_u32 s%d, s%d, %d" % (sJ, sJ, UNR))
    a.e("s_branch L_attn_loop")
    a.label("L_attn_done")
    a.nolds = False
    stamp()
    a.wait_lds_all()
    a.e("s_nop 15")
    a.e("s_nop 3")
    a.e("v_add_f32 v%d, v%d, v%d" % (vL0, vL0, vL1))
    a.e("v_mov_b32 v%d, v%d" % (vT1, vL0))
    a.e("s_nop 1")
    a.e("v_permlane32_swap_b32 v%d, v%d" % (vL0, vT1))
    a.e("s_nop 1")
    a.e("v_add_f32 v%d, v%d, v%d" % (vL0, vL0, vT1))
    a.e("v_rcp_f32 v%d, v%d" % (vL0, vL0))
    a.e("s_nop 0")
    for db in range(4):
        for i in range(16):
            a.e("v_mul_f32 v%d, v%d, v%d" % (O + 16 * db + i, O + 16 * db + i, vL0))
        for p in range(8):
            a.e("v_cvt_pk_bf16_f32 v%d, v%d, v%d" % (O + 16 * db + p, O + 16 * db + 2 * p, O + 16 * db + 2 * p + 1))
        if db == 2:
            a.e("s_add_u32 s%d, s%d, 4096" % (sOB, sOB))
        a.e("buffer_store_dwordx4 %s, v%d, s[%d:%d], s%d offen offset:%d" % (vr(O + 16 * db, 4), vOo, rO, rO + 3, sOB, (db & 1) * 2048))
        a.e("buffer_store_dwordx4 %s, v%d, s[%d:%d], s%d offen offset:%d" % (vr(O + 16 * db + 4, 4), vOo, rO, rO + 3, sOB, (db & 1) * 2048 + 1024))
    if STAMP:
        stamp()
        a.e("s_waitcnt vmcnt(0) lgkmcnt(0)")
        stamp()
        a.e("s_waitcnt lgkmcnt(0)")
        make_srd(a, 88, sWS, sWS + 1, 1 << 20, 0x3000000)
        a.e("s_lshl_b32 s%d, s2, 3" % sT0)
        a.e("s_add_u32 s%d, s%d, s%d" % (sT0, sT0, sW))
        a.e("s_lshl_b32 s%d, s%d, 6" % (sT0, sT0))
        a.e("v_mov_b32 v%d, s%d" % (vT0, sT0))
        for i in range(stamp_n[0]):
            a.e("v_mov_b32 v%d, s%d" % (vT1, 60 + 2 * i))
            a.e("buffer_store_dword v%d, v%d, s[88:91], 0 offen offset:%d" % (vT1, vT0, 4 * i))
            a.e("s_nop 1")
    a.e("s_branch L_attn_end")
    for n, buf in rescale_sites:
        a.label("L_resc_%d" % n)
        a.e("s_nop 15")
        a.e("s_nop 3")
        rescale_body(buf, False)
        a.e("s_branch L_resc_ret_%d" % n)
    a.label("L_attn_end")
    a.e("s_endpgm")
    return name, (NWG, 512, 163840), 256


def gen_out(a):
    name = "outp_kernel"
    kernel_header(a, name)
    NWG = 256
    sX, sWO, sWD, sOut, sWS = 4, 6, 8, 10, 12
    rX, rWO, rWD, rOut, rOW, rHW = 16, 20, 24, 28, 32, 36
    sTB, sNB, sW, sT0, sT1, sT2 = 40, 41, 42, 43, 44, 45
    sLB = 46
    sAct = [47, 48]
    sWt = [49, 50]
    a.e("s_cmp_ge_u32 s2, %d" % NWG)
    a.e("s_cbranch_scc1 L_outp_end")
    a.e("s_load_dwordx2 s[%d:%d], s[0:1], 0" % (sX, sX + 1))
    a.e("s_load_dwordx2 s[%d:%d], s[0:1], 32" % (sWO, sWO + 1))
    a.e("s_load_dwordx2 s[%d:%d], s[0:1], 64" % (sWD, sWD + 1))
    a.e("s_load_dwordx2 s[%d:%d], s[0:1], 72" % (sOut, sOut + 1))
    a.e("s_load_dwordx2 s[%d:%d], s[0:1], 88" % (sWS, sWS + 1))
    NST = P('C_NST', 4)
    ACC = [0, 64]
    FB = 128
    FA = FB + 16 * NST
    vb = FA + 16
    vLane, vT0, vT1, vT2, vT3, vT4 = vb, vb + 1, vb + 2, vb + 3, vb + 4, vb + 5
    vAa = vb + 6
    vDW = vb + 8
    vL16 = vb + 9
    vXo = vb + 10
    vR = vb + 11
    XR = vb + 12
    NV = vb + 16
    a.e("v_and_b32 v%d, 63, v0" % vLane)
    a.e("v_lshrrev_b32 v%d, 6, v0" % vT0)
    a.e("s_and_b32 s%d, s2, 31" % sTB)
    a.e("s_lshr_b32 s%d, s2, 5" % sNB)
    a.e("v_readfirstlane_b32 s%d, v%d" % (sW, vT0))
    a.e("s_waitcnt lgkmcnt(0)")
    make_srd(a, rX, sX, sX + 1, S * D * 2)
    make_srd(a, rWO, sWO, sWO + 1, H * DH * D * 2)
    make_srd(a, rWD, sWD, sWD + 1, DF * D * 2)
    make_srd(a, rOut, sOut, sOut + 1, S * D * 2)
    make_srd(a, rOW, sWS, sWS + 1, O_BYTES, WS_O)
    make_srd(a, rHW, sWS, sWS + 1, H_BYTES, WS_H)
    a.e("s_mul_i32 s%d, s%d, %d" % (sLB, sW, NST * 4096))
    a.e("v_lshlrev_b32 v%d, 4, v%d" % (vL16, vLane))
    a.e("v_lshrrev_b32 v%d, 3, v%d" % (vT0, vLane))
    a.e("v_and_b32 v%d, 7, v%d" % (vT1, vLane))
    a.e("v_lshrrev_b32 v%d, 2, v%d" % (vT2, vLane))
    a.e("v_and_b32 v%d, 4, v%d" % (vT2, vT2))
    a.e("v_xor_b32 v%d, v%d, v%d" % (vT2, vT2, vT1))
    a.e("v_lshlrev_b32 v%d, 4, v%d" % (vT2, vT2))
    a.e("v_lshl_add_u32 v%d, v%d, 10, v%d" % (vDW, vT0, vT2))
    tr_lane_off(a, vT3, vLane, vT0, vT1)
    a.e("v_lshrrev_b32 v%d, 5, v%d" % (vT2, vLane))
    a.e("v_bfe_u32 v%d, v%d, 2, 2" % (vT1, vLane))
    a.e("v_lshl_add_u32 v%d, v%d, 3, v%d" % (vT0, vT2, vT1))
    a.e("v_lshl_add_u32 v%d, v%d, 7, v%d" % (vT3, vT0, vT3))
    a.e("v_add_u32 v%d, s%d, v%d" % (vT3, sLB, vT3))
    a.e("v_lshrrev_b32 v%d, 1, v%d" % (vT1, vT1))
    a.e("v_lshlrev_b32 v%d, 6, v%d" % (vT1, vT1))
    a.e("v_add_u32 v%d, v%d, v%d" % (vAa + 0, vT3, vT1))
    a.e("v_xor_b32 v%d, 64, v%d" % (vT1, vT1))
    a.e("v_add_u32 v%d, v%d, v%d" % (vAa + 1, vT3, vT1))
    RBS = (256 * 1024, 112 * 1024)
    for mi in range(2):
        a.e("s_mul_i32 s%d, s%d, %d" % (sAct[mi], sTB, 2 * RBS[mi]))
        a.e("s_lshl_b32 s%d, s%d, 11" % (sT0, sW))
        a.e("s_add_u32 s%d, s%d, s%d" % (sAct[mi], sAct[mi], sT0))
        a.e("s_lshl_b32 s%d, s%d, 15" % (sWt[mi], sW))
        a.e("s_lshl_b32 s%d, s%d, 7" % (sT0, sNB))
        a.e("s_add_u32 s%d, s%d, s%d" % (sWt[mi], sWt[mi], sT0))
    chunks = [(0, c) for c in range(16)] + [(1, c) for c in range(7)]

    def issue(n):
        mi, c = chunks[n]
        st = n % NST
        rAct = (rOW, rHW)[mi]
        rWt = (rWO, rWD)[mi]
        for i in range(4):
            a.e("s_add_u32 s%d, s%d, %d" % (sT0, sWt[mi], (c * 256 + 8 * i) * 1024))
            a.e("s_add_u32 m0, s%d, %d" % (sLB, st * 4096 + i * 1024))
            a.e("s_nop 0")
            a.e("buffer_load_dwordx4 v%d, s[%d:%d], s%d offen lds" % (vDW, rWt, rWt + 3, sT0))
        for tb in range(2):
            a.e("s_add_u32 s%d, s%d, %d" % (sT0, sAct[mi], c * 16384 + tb * RBS[mi]))
            for ks in range(2):
                a.e("buffer_load_dwordx4 %s, v%d, s[%d:%d], s%d offen offset:%d" % (vr(FB + 16 * st + 8 * ks + 4 * tb, 4), vL16, rAct, rAct + 3, sT0, ks * 1024))

    for n in range(NST - 1):
        issue(n)
    for n in range(len(chunks)):
        if n + NST - 1 < len(chunks):
            issue(n + NST - 1)
        left = min(NST - 1, len(chunks) - 1 - n)
        a.e("s_waitcnt vmcnt(%d)" % (8 * left))
        mi, c = chunks[n]
        st = n % NST
        for ks in range(2):
            for nb in range(2):
                for t in range(2):
                    a.lds("ds_read_b64_tr_b16 %s, v%d offset:%d" % (vr(FA + 8 * ks + 4 * nb + 2 * t, 2), vAa + nb, st * 4096 + (16 * ks + 4 * t) * 128), ("c", n, ks))
        for ks in range(2):
            a.wait_lds(("c", n, ks))
            for nb in range(2):
                for tb in range(2):
                    d = ACC[mi] + 16 * (nb * 2 + tb)
                    a.e("v_mfma_f32_32x32x16_bf16 %s, %s, %s, %s" % (vr(d, 16), vr(FA + 8 * ks + 4 * nb, 4), vr(FB + 16 * st + 8 * ks + 4 * tb, 4), "0" if (c == 0 and ks == 0) else vr(d, 16)))
    a.e("s_nop 15")
    a.e("s_nop 3")
    a.e("s_bfe_u32 s%d, s%d, 0x10001" % (sT0, sW))
    a.e("s_lshl_b32 s%d, s%d, 5" % (sT0, sT0))
    a.e("s_lshl_b32 s%d, s%d, 6" % (sT1, sTB))
    a.e("s_add_u32 s%d, s%d, s%d" % (sT0, sT0, sT1))
    a.e("v_and_b32 v%d, 31, v%d" % (vT0, vLane))
    a.e("v_add_u32 v%d, s%d, v%d" % (vT0, sT0, vT0))
    a.e("v_lshrrev_b32 v%d, 5, v%d" % (vT1, vLane))
    a.e("v_lshlrev_b32 v%d, 4, v%d" % (vT1, vT1))
    a.e("v_lshl_add_u32 v%d, v%d, 10, v%d" % (vXo, vT0, vT1))
    a.e("s_lshr_b32 s%d, s%d, 2" % (sT0, sW))
    a.e("s_lshl_b32 s%d, s%d, 6" % (sT0, sT0))
    a.e("s_and_b32 s%d, s%d, 1" % (sT1, sW))
    a.e("s_lshl_b32 s%d, s%d, 5" % (sT1, sT1))
    a.e("s_add_u32 s%d, s%d, s%d" % (sT0, sT0, sT1))
    a.e("s_lshl_b32 s%d, s%d, 7" % (sT1, sNB))
    a.e("s_add_u32 s%d, s%d, s%d" % (sT0, sT0, sT1))
    a.e("v_add_u32 v%d, s%d, v%d" % (vXo, sT0, vXo))
    a.e("buffer_load_dwordx4 %s, v%d, s[%d:%d], 0 offen" % (vr(XR, 4), vXo, rX, rX + 3))
    a.e("s_lshl_b32 s%d, s%d, 14" % (sT0, sW))
    a.e("v_add_u32 v%d, s%d, v%d" % (vT0, sT0, vL16))
    a.e("s_lshl_b32 s%d, s%d, 11" % (sT0, sW))
    a.e("v_add_u32 v%d, s%d, v%d" % (vR, sT0, vL16))
    a.e("v_add_u32 v%d, 0x10000, v%d" % (vT4, vR))
    RES = [FB, FB + 8]
    TMP = FB + 16
    for part in range(2):
        a.e("s_barrier")
        for i in range(16):
            a.e("ds_write_b128 v%d, %s offset:%d" % (vT0, vr(ACC[part] + 4 * i, 4), i * 1024))
        a.e("s_waitcnt lgkmcnt(0)")
        a.e("s_barrier")
        for src in range(8):
            for i in range(2):
                a.e("ds_read_b128 %s, v%d offset:%d" % (vr(ACC[part] + 8 * src + 4 * i, 4), vR if src < 4 else vT4, (src & 3) * 16384 + i * 1024))
            if src == 6:
                a.e("s_waitcnt lgkmcnt(0)")
        a.e("s_waitcnt lgkmcnt(0)")
        B = ACC[part]
        for i in range(8):
            a.e("v_add_f32 v%d, v%d, v%d" % (B + i, B + i, B + 8 + i))
            a.e("v_add_f32 v%d, v%d, v%d" % (B + 16 + i, B + 16 + i, B + 24 + i))
            a.e("v_add_f32 v%d, v%d, v%d" % (B + 32 + i, B + 32 + i, B + 40 + i))
            a.e("v_add_f32 v%d, v%d, v%d" % (B + 48 + i, B + 48 + i, B + 56 + i))
        for i in range(8):
            a.e("v_add_f32 v%d, v%d, v%d" % (B + i, B + i, B + 16 + i))
            a.e("v_add_f32 v%d, v%d, v%d" % (B + 32 + i, B + 32 + i, B + 48 + i))
        for i in range(8):
            a.e("v_add_f32 v%d, v%d, v%d" % (B + i, B + i, B + 32 + i))
    a.e("s_waitcnt vmcnt(0)")
    a.e("s_mov_b32 s%d, %s" % (sT2, f32(-math.log2(math.e))))
    for p in range(4):
        s0, s1, f0, f1 = 2 * p, 2 * p + 1, 64 + 2 * p, 64 + 2 * p + 1
        round_bf16_pair(a, s0, s1, s0, s1, vT0)
        round_bf16_pair(a, f0, f1, f0, f1, vT0)
        a.e("v_mul_f32 v%d, s%d, v%d" % (vT0, sT2, f0))
        a.e("v_mul_f32 v%d, s%d, v%d" % (vT1, sT2, f1))
        a.e("v_exp_f32 v%d, v%d" % (vT0, vT0))
        a.e("v_exp_f32 v%d, v%d" % (vT1, vT1))
        a.e("s_nop 0")
        a.e("v_add_f32 v%d, 1.0, v%d" % (vT0, vT0))
        a.e("v_add_f32 v%d, 1.0, v%d" % (vT1, vT1))
        a.e("v_rcp_f32 v%d, v%d" % (vT0, vT0))
        a.e("v_rcp_f32 v%d, v%d" % (vT1, vT1))
        a.e("s_nop 0")
        a.e("v_mul_f32 v%d, v%d, v%d" % (f0, f0, vT0))
        a.e("v_mul_f32 v%d, v%d, v%d" % (f1, f1, vT1))
        round_bf16_pair(a, f0, f1, f0, f1, vT0)
        a.e("v_mul_f32 v%d, v%d, v%d" % (s0, s0, f0))
        a.e("v_mul_f32 v%d, v%d, v%d" % (s1, s1, f1))
        round_bf16_pair(a, s0, s1, s0, s1, vT0)
        a.e("v_lshlrev_b32 v%d, 16, v%d" % (vT0, XR + p))
        a.e("v_and_b32 v%d, 0xffff0000, v%d" % (vT1, XR + p))
        a.e("v_add_f32 v%d, v%d, v%d" % (s0, s0, vT0))
        a.e("v_add_f32 v%d, v%d, v%d" % (s1, s1, vT1))
        a.e("v_cvt_pk_bf16_f32 v%d, v%d, v%d" % (XR + p, s0, s1))
    a.e("buffer_store_dwordx4 %s, v%d, s[%d:%d], 0 offen" % (vr(XR, 4), vXo, rOut, rOut + 3))
    a.label("L_outp_end")
    a.e("s_endpgm")
    return name, (NWG, 512, 131072), NV


def main():
    a = Asm()
    ks = []
    for g in (gen_ln, gen_ffn1, gen_attn, gen_out):
        a.pend = []
        ks.append(g(a))
    head = []
    for name, (nwg, blk, lds), _ in ks:
        head.append("; @launch kernel=%s grid=(%d,1,1) block=(%d,1,1) lds=%d" % (name, nwg, blk, lds))
    head.append('.amdgcn_target "amdgcn-amd-amdhsa--gfx950"')
    head.append(".text")
    tail = ['.section .rodata,"a"']
    for name, _, vg in ks:
        tail.append(".p2align 6")
        tail.append(kernel_desc(name, vg))
    open(OUT, "w").write("\n".join(head + a.lines + tail) + "\n")


if __name__ == "__main__":
    main()
```

```python
import math, struct, sys, os
P = lambda k, d: int(os.environ.get(k, d))

OUT = os.environ.get("GEN_OUT", "recurrent_scan__mha_block_cached__glu_gated_geglu__prompt.s")

S = 2048; D = 512; H = 32; DH = 128; DF = 1792
WS_XN = 0
WS_H = 0x200000
WS_O = 0x1000000
XN_BYTES = S * D * 2
H_BYTES = S * DF * 2
O_BYTES = S * H * DH * 2


def f32(x):
    return "0x%08x" % struct.unpack("<I", struct.pack("<f", x))[0]


class Asm:
    def __init__(self):
        self.lines = []
        self.pend = []
        self.nlabel = 0
        self.nolds = False

    def e(self, s):
        self.lines.append("    " + s)

    def c(self, s):
        self.lines.append("    ; " + s)

    def label(self, name):
        self.lines.append(name + ":")

    def raw(self, s):
        self.lines.append(s)

    def lds(self, text, tag):
        if P('X_NOLDS', 0) and self.nolds:
            return
        self.e(text)
        self.pend.append(tag)
        assert len(self.pend) <= 15, "too many outstanding lgkm ops"

    def wait_lds(self, tag):
        if tag not in self.pend:
            return
        idx = len(self.pend) - 1 - self.pend[::-1].index(tag)
        n = len(self.pend) - idx - 1
        self.e("s_waitcnt lgkmcnt(%d)" % n)
        self.pend = self.pend[idx + 1:]

    def wait_lds_all(self):
        if self.pend:
            self.e("s_waitcnt lgkmcnt(0)")
        self.pend = []


def vr(a, n):
    return "v[%d:%d]" % (a, a + n - 1)


def sr(a, n):
    return "s[%d:%d]" % (a, a + n - 1)


def make_srd(a, d, lo, hi, nbytes, add=0):
    if add:
        a.e("s_add_u32 s%d, s%d, 0x%x" % (d, lo, add))
        a.e("s_addc_u32 s%d, s%d, 0" % (d + 1, hi))
        a.e("s_and_b32 s%d, s%d, 0xffff" % (d + 1, d + 1))
    else:
        a.e("s_mov_b32 s%d, s%d" % (d, lo))
        a.e("s_and_b32 s%d, s%d, 0xffff" % (d + 1, hi))
    a.e("s_mov_b32 s%d, 0x%x" % (d + 2, nbytes))
    a.e("s_mov_b32 s%d, 0x00020000" % (d + 3))


def make_srd_s(a, d, lo, hi, nbytes, soff):
    a.e("s_add_u32 s%d, s%d, s%d" % (d, lo, soff))
    a.e("s_addc_u32 s%d, s%d, 0" % (d + 1, hi))
    a.e("s_and_b32 s%d, s%d, 0xffff" % (d + 1, d + 1))
    a.e("s_mov_b32 s%d, 0x%x" % (d + 2, nbytes))
    a.e("s_mov_b32 s%d, 0x00020000" % (d + 3))


def kernel_header(a, name):
    a.raw(".globl %s" % name)
    a.raw(".p2align 8")
    a.raw(".type %s,@function" % name)
    a.label(name)


def kernel_desc(name, vgpr, sgpr=102):
    acc = (vgpr + 3) // 4 * 4
    return """.amdhsa_kernel %s
  .amdhsa_next_free_vgpr %d
  .amdhsa_next_free_sgpr %d
  .amdhsa_accum_offset %d
  .amdhsa_group_segment_fixed_size 0
  .amdhsa_kernarg_size 96
  .amdhsa_user_sgpr_count 2
  .amdhsa_user_sgpr_kernarg_segment_ptr 1
  .amdhsa_system_sgpr_workgroup_id_x 1
.end_amdhsa_kernel""" % (name, vgpr, sgpr, acc)


def round_bf16_pair(a, d0, d1, s0, s1, tmp):
    a.e("v_cvt_pk_bf16_f32 v%d, v%d, v%d" % (tmp, s0, s1))
    a.e("v_lshlrev_b32 v%d, 16, v%d" % (d0, tmp))
    a.e("v_and_b32 v%d, 0xffff0000, v%d" % (d1, tmp))


def tr_lane_off(a, dst, vL, t0, t1):
    a.e("v_and_b32 v%d, 16, v%d" % (dst, vL))
    a.e("v_lshlrev_b32 v%d, 1, v%d" % (dst, dst))
    a.e("v_and_b32 v%d, 1, v%d" % (t0, vL))
    a.e("v_lshlrev_b32 v%d, 4, v%d" % (t0, t0))
    a.e("v_and_b32 v%d, 2, v%d" % (t1, vL))
    a.e("v_lshlrev_b32 v%d, 2, v%d" % (t1, t1))
    a.e("v_add3_u32 v%d, v%d, v%d, v%d" % (dst, dst, t0, t1))


def gen_ln(a):
    name = "lnorm_kernel"
    kernel_header(a, name)
    NWG = 512
    sX, sWS = 4, 6
    rX, rXN = 8, 12
    sT0, sT1, sW = 16, 17, 18
    a.e("s_cmp_ge_u32 s2, %d" % NWG)
    a.e("s_cbranch_scc1 L_ln_end")
    a.e("s_load_dwordx2 s[%d:%d], s[0:1], 0" % (sX, sX + 1))
    a.e("s_load_dwordx2 s[%d:%d], s[0:1], 88" % (sWS, sWS + 1))
    vLane, vT0, vT1, vOff, vSt, vSum, vMean, vR = 1, 2, 3, 4, 5, 6, 7, 8
    XP = 12
    XU = 16
    a.e("v_and_b32 v%d, 63, v0" % vLane)
    a.e("v_lshrrev_b32 v%d, 6, v0" % vT0)
    a.e("s_lshl_b32 s%d, s2, 2" % sT0)
    a.e("v_readfirstlane_b32 s%d, v%d" % (sW, vT0))
    a.e("s_waitcnt lgkmcnt(0)")
    make_srd(a, rX, sX, sX + 1, S * D * 2)
    make_srd(a, rXN, sWS, sWS + 1, XN_BYTES)
    a.e("s_add_u32 s%d, s%d, s%d" % (sT0, sT0, sW))
    a.e("s_lshl_b32 s%d, s%d, 10" % (sT1, sT0))
    a.e("v_lshlrev_b32 v%d, 4, v%d" % (vOff, vLane))
    a.e("buffer_load_dwordx4 %s, v%d, s[%d:%d], s%d offen" % (vr(XP, 4), vOff, rX, rX + 3, sT1))
    a.e("v_lshrrev_b32 v%d, 1, v%d" % (vT0, vLane))
    a.e("v_lshlrev_b32 v%d, 10, v%d" % (vT0, vT0))
    a.e("v_and_b32 v%d, 1, v%d" % (vT1, vLane))
    a.e("v_lshl_add_u32 v%d, v%d, 9, v%d" % (vSt, vT1, vT0))
    a.e("s_lshr_b32 s%d, s%d, 5" % (sT1, sT0))
    a.e("s_lshl_b32 s%d, s%d, 15" % (sT1, sT1))
    a.e("s_and_b32 s%d, s%d, 31" % (sT0, sT0))
    a.e("s_lshl_b32 s%d, s%d, 4" % (sT0, sT0))
    a.e("s_add_u32 s%d, s%d, s%d" % (sT1, sT1, sT0))
    a.e("v_add_u32 v%d, s%d, v%d" % (vSt, sT1, vSt))
    a.e("s_waitcnt vmcnt(0)")
    for i in range(4):
        a.e("v_lshlrev_b32 v%d, 16, v%d" % (XU + 2 * i, XP + i))
        a.e("v_and_b32 v%d, 0xffff0000, v%d" % (XU + 2 * i + 1, XP + i))

    def reduce(v):
        for msk in (1, 2, 4, 8, 16):
            a.e("ds_swizzle_b32 v%d, v%d offset:0x%x" % (vT0, v, (msk << 10) | 0x1f))
            a.e("s_waitcnt lgkmcnt(0)")
            a.e("v_add_f32 v%d, v%d, v%d" % (v, v, vT0))
        a.e("v_mov_b32 v%d, v%d" % (vT0, v))
        a.e("s_nop 1")
        a.e("v_permlane32_swap_b32 v%d, v%d" % (v, vT0))
        a.e("s_nop 1")
        a.e("v_add_f32 v%d, v%d, v%d" % (v, v, vT0))

    a.e("v_add_f32 v%d, v%d, v%d" % (vSum, XU, XU + 1))
    for i in range(2, 8):
        a.e("v_add_f32 v%d, v%d, v%d" % (vSum, vSum, XU + i))
    reduce(vSum)
    a.e("v_mul_f32 v%d, %s, v%d" % (vMean, f32(1.0 / D), vSum))
    a.e("v_mov_b32 v%d, 0" % vSum)
    for i in range(8):
        a.e("v_sub_f32 v%d, v%d, v%d" % (vT1, XU + i, vMean))
        a.e("v_fmac_f32 v%d, v%d, v%d" % (vSum, vT1, vT1))
    reduce(vSum)
    a.e("v_mul_f32 v%d, %s, v%d" % (vSum, f32(1.0 / D), vSum))
    round_bf16_pair(a, vMean, vSum, vMean, vSum, vT0)
    a.e("v_add_f32 v%d, %s, v%d" % (vSum, f32(1e-5), vSum))
    round_bf16_pair(a, vSum, vT1, vSum, vSum, vT0)
    a.e("v_sqrt_f32 v%d, v%d" % (vSum, vSum))
    a.e("s_nop 0")
    round_bf16_pair(a, vSum, vT1, vSum, vSum, vT0)
    a.e("v_rcp_f32 v%d, v%d" % (vR, vSum))
    for i in range(4):
        a.e("v_sub_f32 v%d, v%d, v%d" % (XU + 2 * i, XU + 2 * i, vMean))
        a.e("v_sub_f32 v%d, v%d, v%d" % (XU + 2 * i + 1, XU + 2 * i + 1, vMean))
        round_bf16_pair(a, XU + 2 * i, XU + 2 * i + 1, XU + 2 * i, XU + 2 * i + 1, vT0)
        a.e("v_mul_f32 v%d, v%d, v%d" % (XU + 2 * i, XU + 2 * i, vR))
        a.e("v_mul_f32 v%d, v%d, v%d" % (XU + 2 * i + 1, XU + 2 * i + 1, vR))
        a.e("v_cvt_pk_bf16_f32 v%d, v%d, v%d" % (XP + i, XU + 2 * i, XU + 2 * i + 1))
    a.e("buffer_store_dwordx4 %s, v%d, s[%d:%d], 0 offen" % (vr(XP, 4), vSt, rXN, rXN + 3))
    a.label("L_ln_end")
    a.e("s_endpgm")
    return name, (NWG, 256, 0), 32


def load_xn_frags(a, X, vL16, rXN, sBase, sTmp):
    for g in range(8):
        a.e("s_add_u32 s%d, s%d, %d" % (sTmp, sBase, g * 4096))
        for i in range(4):
            ks = 4 * g + i
            a.e("buffer_load_dwordx4 %s, v%d, s[%d:%d], s%d offen offset:%d" % (vr(X + 4 * ks, 4), vL16, rXN, rXN + 3, sTmp, i * 1024))


def gen_ffn1(a):
    name = "ffn1_kernel"
    kernel_header(a, name)
    NWG = 8 * 28
    sX, sWG, sWU, sWS = 4, 6, 8, 10
    rX, rWG, rWU, rXN, rH = 12, 16, 20, 24, 28
    sRB, sCB, sW, sT0, sT1, sT2 = 32, 33, 34, 35, 36, 37
    sK1, sK2, sXB, sHB = 38, 39, 40, 41
    a.e("s_cmp_ge_u32 s2, %d" % NWG)
    a.e("s_cbranch_scc1 L_ffn1_end")
    a.e("s_load_dwordx2 s[%d:%d], s[0:1], 0" % (sX, sX + 1))
    a.e("s_load_dwordx2 s[%d:%d], s[0:1], 48" % (sWG, sWG + 1))
    a.e("s_load_dwordx2 s[%d:%d], s[0:1], 56" % (sWU, sWU + 1))
    a.e("s_load_dwordx2 s[%d:%d], s[0:1], 88" % (sWS, sWS + 1))
    X = 0
    ACC = 128
    FR = 192
    vLane, vT0, vT1, vT2, vT3, vT4 = 232, 233, 234, 235, 236, 237
    vA = 238
    vXo, vDW, vSum, vSq, vMean, vRinv = 242, 243, 244, 245, 246, 247
    vHo = 248
    a.e("v_and_b32 v%d, 63, v0" % vLane)
    a.e("v_lshrrev_b32 v%d, 6, v0" % vT0)
    a.e("s_and_b32 s%d, s2, 7" % sRB)
    a.e("s_lshr_b32 s%d, s2, 3" % sCB)
    a.e("v_readfirstlane_b32 s%d, v%d" % (sW, vT0))
    a.e("s_waitcnt lgkmcnt(0)")
    make_srd(a, rX, sX, sX + 1, S * D * 2)
    make_srd(a, rWG, sWG, sWG + 1, D * DF * 2)
    make_srd(a, rWU, sWU, sWU + 1, D * DF * 2)
    make_srd(a, rXN, sWS, sWS + 1, XN_BYTES, WS_XN) if WS_XN else make_srd(a, rXN, sWS, sWS + 1, XN_BYTES)
    make_srd(a, rH, sWS, sWS + 1, H_BYTES, WS_H)
    a.e("v_lshrrev_b32 v%d, 3, v%d" % (vT0, vLane))
    a.e("s_movk_i32 s%d, 3584" % sT0)
    a.e("v_mul_lo_u32 v%d, v%d, s%d" % (vT0, vT0, sT0))
    a.e("v_lshrrev_b32 v%d, 2, v%d" % (vT1, vLane))
    a.e("v_and_b32 v%d, 4, v%d" % (vT1, vT1))
    a.e("v_and_b32 v%d, 7, v%d" % (vT2, vLane))
    a.e("v_xor_b32 v%d, v%d, v%d" % (vT1, vT1, vT2))
    a.e("v_lshl_add_u32 v%d, v%d, 4, v%d" % (vDW, vT1, vT0))
    a.e("v_lshlrev_b32 v%d, 4, v%d" % (vXo, vLane))
    a.e("s_lshl_b32 s%d, s%d, 3" % (sK2, sRB))
    a.e("s_add_u32 s%d, s%d, s%d" % (sK2, sK2, sW))
    a.e("s_lshl_b32 s%d, s%d, 15" % (sXB, sK2))
    a.e("s_mul_i32 s%d, s%d, %d" % (sT0, sW, 16 * 3584))
    a.e("s_lshl_b32 s%d, s%d, 7" % (sT1, sCB))
    a.e("s_add_u32 s%d, s%d, s%d" % (sT0, sT0, sT1))
    a.e("s_lshl_b32 s%d, s%d, 11" % (sT1, sW))
    for q in range(4):
        for i in range(2):
            a.e("s_add_u32 s%d, s%d, %d" % (sT2, sT0, (128 * q + 8 * i) * 3584))
            a.e("s_add_u32 m0, s%d, %d" % (sT1, q * 16384 + i * 1024))
            a.e("s_nop 0")
            a.e("buffer_load_dwordx4 v%d, s[%d:%d], s%d offen lds" % (vDW, rWG, rWG + 3, sT2))
            a.e("s_add_u32 m0, s%d, %d" % (sT1, 65536 + q * 16384 + i * 1024))
            a.e("s_nop 0")
            a.e("buffer_load_dwordx4 v%d, s[%d:%d], s%d offen lds" % (vDW, rWU, rWU + 3, sT2))
        for g in range(2):
            a.e("s_add_u32 s%d, s%d, %d" % (sT2, sXB, (2 * q + g) * 4096))
            for i in range(4):
                ks = 8 * q + 4 * g + i
                a.e("buffer_load_dwordx4 %s, v%d, s[%d:%d], s%d offen offset:%d" % (vr(X + 4 * ks, 4), vXo, rXN, rXN + 3, sT2, i * 1024))
    a.e("s_mul_i32 s%d, s%d, %d" % (sHB, sK2, 112 * 1024))
    a.e("s_lshl_b32 s%d, s%d, 12" % (sT2, sCB))
    a.e("s_add_u32 s%d, s%d, s%d" % (sHB, sHB, sT2))
    tr_lane_off(a, vT2, vLane, vT0, vT1)
    a.e("v_lshrrev_b32 v%d, 5, v%d" % (vT0, vLane))
    a.e("v_lshlrev_b32 v%d, 3, v%d" % (vT0, vT0))
    a.e("v_bfe_u32 v%d, v%d, 2, 2" % (vT1, vLane))
    a.e("v_add_u32 v%d, v%d, v%d" % (vT0, vT0, vT1))
    a.e("v_lshl_add_u32 v%d, v%d, 7, v%d" % (vT2, vT0, vT2))
    a.e("v_lshrrev_b32 v%d, 1, v%d" % (vT1, vT1))
    a.e("v_lshlrev_b32 v%d, 6, v%d" % (vT1, vT1))
    a.e("v_add_u32 v%d, v%d, v%d" % (vA + 0, vT2, vT1))
    a.e("v_xor_b32 v%d, 64, v%d" % (vT1, vT1))
    a.e("v_add_u32 v%d, v%d, v%d" % (vA + 1, vT2, vT1))
    a.e("v_add_u32 v%d, 0x10000, v%d" % (vA + 2, vA + 0))
    a.e("v_add_u32 v%d, 0x10000, v%d" % (vA + 3, vA + 1))
    NFR = 10
    PD = 6

    def frag(n):
        return FR + 4 * (n % NFR)

    for qt in range(4):
        a.e("s_waitcnt vmcnt(%d)" % (12 * (3 - qt)))
        a.e("s_barrier")
        seq = [(ks, q) for ks in range(8 * qt, 8 * qt + 8) for q in range(4)]

        def issue(n):
            ks, q = seq[n]
            for t in range(2):
                a.lds("ds_read_b64_tr_b16 %s, v%d offset:%d" % (vr(frag(n) + 2 * t, 2), vA + q, (16 * ks + 4 * t) * 128), n)

        for n in range(PD):
            issue(n)
        for n in range(len(seq)):
            if n + PD < len(seq):
                issue(n + PD)
            ks, q = seq[n]
            a.wait_lds(n)
            acc = ACC + 16 * q
            a.e("v_mfma_f32_32x32x16_bf16 %s, %s, %s, %s" % (vr(acc, 16), vr(frag(n), 4), vr(X + 4 * ks, 4), "0" if ks == 0 else vr(acc, 16)))
    a.e("s_nop 15")
    a.e("s_nop 3")
    KK = -2.0 * math.sqrt(2.0 / math.pi) * math.log2(math.e)
    a.e("s_mov_b32 s%d, %s" % (sK1, f32(KK * 0.044715)))
    a.e("v_mov_b32 v%d, %s" % (vT4, f32(KK)))
    for cs in range(2):
        G = ACC + 16 * cs
        U = ACC + 32 + 16 * cs
        for p in range(8):
            g0, g1, u0, u1 = G + 2 * p, G + 2 * p + 1, U + 2 * p, U + 2 * p + 1
            round_bf16_pair(a, g0, g1, g0, g1, vT0)
            round_bf16_pair(a, u0, u1, u0, u1, vT0)
            for g, t in ((g0, vT0), (g1, vT1)):
                a.e("v_mul_f32 v%d, v%d, v%d" % (t, g, g))
                a.e("v_fma_f32 v%d, v%d, s%d, v%d" % (t, t, sK1, vT4))
                a.e("v_mul_f32 v%d, v%d, v%d" % (t, t, g))
            a.e("v_exp_f32 v%d, v%d" % (vT0, vT0))
            a.e("v_exp_f32 v%d, v%d" % (vT1, vT1))
            a.e("s_nop 0")
            a.e("v_add_f32 v%d, 1.0, v%d" % (vT0, vT0))
            a.e("v_add_f32 v%d, 1.0, v%d" % (vT1, vT1))
            a.e("v_rcp_f32 v%d, v%d" % (vT0, vT0))
            a.e("v_rcp_f32 v%d, v%d" % (vT1, vT1))
            a.e("s_nop 0")
            a.e("v_mul_f32 v%d, v%d, v%d" % (g0, g0, vT0))
            a.e("v_mul_f32 v%d, v%d, v%d" % (g1, g1, vT1))
            round_bf16_pair(a, g0, g1, g0, g1, vT0)
            a.e("v_mul_f32 v%d, v%d, v%d" % (g0, g0, u0))
            a.e("v_mul_f32 v%d, v%d, v%d" % (g1, g1, u1))
            a.e("v_cvt_pk_bf16_f32 v%d, v%d, v%d" % (G + p, g0, g1))
        a.e("buffer_store_dwordx4 %s, v%d, s[%d:%d], s%d offen offset:%d" % (vr(G, 4), vXo, rH, rH + 3, sHB, cs * 2048))
        a.e("buffer_store_dwordx4 %s, v%d, s[%d:%d], s%d offen offset:%d" % (vr(G + 4, 4), vXo, rH, rH + 3, sHB, cs * 2048 + 1024))
    a.label("L_ffn1_end")
    a.e("s_endpgm")
    return name, (NWG, 512, 131072), 256


def gen_attn(a):
    name = "attn_kernel"
    kernel_header(a, name)
    NWG = 256
    sK, sV, sWQ, sWS = 4, 6, 8, 10
    rK, rV, rWQ, rXN, rO = 12, 16, 20, 24, 28
    sHead, sQB, sW, sT0, sT1, sT2 = 32, 33, 34, 35, 36, 37
    sC, sJ, sKoff, sVoff, sM0K, sM0V = 38, 39, 40, 41, 42, 43
    sRBk, sXB, sOB, sT3 = 44, 45, 46, 47
    sGB, sGL, sWB, sHB = 84, 85, 86, 87
    a.e("s_cmp_ge_u32 s2, %d" % NWG)
    a.e("s_cbranch_scc1 L_attn_end")
    a.e("s_load_dwordx2 s[%d:%d], s[0:1], 8" % (sK, sK + 1))
    a.e("s_load_dwordx2 s[%d:%d], s[0:1], 16" % (sV, sV + 1))
    a.e("s_load_dwordx2 s[%d:%d], s[0:1], 24" % (sWQ, sWQ + 1))
    a.e("s_load_dwordx2 s[%d:%d], s[0:1], 88" % (sWS, sWS + 1))
    rWG, rWU, rH = 48, 52, 56
    a.e("s_load_dwordx4 s[%d:%d], s[0:1], 48" % (rWG, rWG + 3))
    O = 0
    SB = [64, 96]
    Q = 128
    FR = 160
    NFR = P('A_NFR', 8)
    X = 0
    QACC = 160
    PFR = 192
    vKa = 224
    vVa = 232
    vDK0, vDK1, vDV = 236, 237, 238
    vM, vM8, vL0, vL1 = 239, 240, 241, 242
    vT0, vT1, vT2, vT3, vT4 = 243, 244, 245, 246, 247
    vLane, vOo = 248, 249
    vWa = 250
    vDW = 254
    LDS_K = 98304
    LDS_V = 0
    a.e("v_and_b32 v%d, 63, v0" % vLane)
    a.e("v_lshrrev_b32 v%d, 6, v0" % vT0)
    a.e("s_lshr_b32 s%d, s2, 6" % sHead)
    a.e("s_lshl_b32 s%d, s%d, 3" % (sHead, sHead))
    a.e("s_and_b32 s%d, s2, 7" % sT0)
    a.e("s_or_b32 s%d, s%d, s%d" % (sHead, sHead, sT0))
    a.e("s_bfe_u32 s%d, s2, 0x30003" % sQB)
    a.e("v_readfirstlane_b32 s%d, v%d" % (sW, vT0))
    a.e("s_waitcnt lgkmcnt(0)")
    a.e("s_lshl_b32 s%d, s%d, 19" % (sT0, sHead))
    make_srd_s(a, rK, sK, sK + 1, S * DH * 2, sT0)
    make_srd_s(a, rV, sV, sV + 1, S * DH * 2, sT0)
    make_srd(a, rWQ, sWQ, sWQ + 1, D * H * DH * 2)
    make_srd(a, rXN, sWS, sWS + 1, XN_BYTES)
    make_srd(a, rO, sWS, sWS + 1, O_BYTES, WS_O)
    make_srd(a, rWU, rWG + 2, rWG + 3, D * DF * 2)
    make_srd(a, rWG, rWG, rWG + 1, D * DF * 2)
    make_srd(a, rH, sWS, sWS + 1, H_BYTES, WS_H)
    a.e("s_cmp_lt_u32 s%d, 28" % sHead)
    a.e("s_cselect_b32 s%d, s%d, 0" % (rH + 2, rH + 2))
    STAMP = P('A_STAMP', 0)
    stamp_n = [0]
    def stamp():
        if not STAMP:
            return
        a.e("s_memtime s[%d:%d]" % (60 + 2 * stamp_n[0], 61 + 2 * stamp_n[0]))
        stamp_n[0] += 1
    stamp()
    a.e("v_lshrrev_b32 v%d, 4, v%d" % (vT0, vLane))
    a.e("v_and_b32 v%d, 15, v%d" % (vT1, vLane))
    a.e("v_lshlrev_b32 v%d, 2, v%d" % (vT2, vT0))
    a.e("v_xor_b32 v%d, v%d, v%d" % (vT2, vT2, vT1))
    a.e("v_lshlrev_b32 v%d, 4, v%d" % (vT2, vT2))
    a.e("v_lshl_add_u32 v%d, v%d, 8, v%d" % (vDV, vT0, vT2))
    a.e("v_lshl_add_u32 v%d, v%d, 13, v%d" % (vDW, vT0, vT2))
    a.e("s_and_b32 s%d, s%d, 1" % (sT0, sW))
    a.e("s_lshl_b32 s%d, s%d, 3" % (sT0, sT0))
    a.e("v_add_u32 v%d, s%d, v%d" % (vT2, sT0, vT0))
    a.e("v_xor_b32 v%d, v%d, v%d" % (vT3, vT2, vT1))
    a.e("v_lshlrev_b32 v%d, 4, v%d" % (vT3, vT3))
    a.e("v_lshl_add_u32 v%d, v%d, 8, v%d" % (vDK0, vT0, vT3))
    a.e("v_add_u32 v%d, 4, v%d" % (vT2, vT2))
    a.e("v_xor_b32 v%d, v%d, v%d" % (vT3, vT2, vT1))
    a.e("v_lshlrev_b32 v%d, 4, v%d" % (vT3, vT3))
    a.e("v_lshl_add_u32 v%d, v%d, 8, v%d" % (vDK1, vT0, vT3))
    a.e("s_lshl_b32 s%d, s%d, 11" % (sT1, sW))
    a.e("s_add_u32 s%d, s%d, %d" % (sM0K, sT1, LDS_K))
    a.e("s_add_u32 s%d, s%d, %d" % (sM0V, sT1, LDS_V))

    def dma_k(slot, soff):
        a.e("s_add_u32 m0, s%d, %d" % (sM0K, slot * 16384))
        a.e("s_nop 0")
        a.e("buffer_load_dwordx4 v%d, s[%d:%d], s%d offen lds" % (vDK0, rK, rK + 3, soff))
        a.e("buffer_load_dwordx4 v%d, s[%d:%d], s%d offen offset:1024 lds" % (vDK1, rK, rK + 3, soff))

    def dma_v(slot, soff):
        a.e("s_add_u32 m0, s%d, %d" % (sM0V, slot * 16384))
        a.e("s_nop 0")
        a.e("buffer_load_dwordx4 v%d, s[%d:%d], s%d offen lds" % (vDV, rV, rV + 3, soff))
        a.e("buffer_load_dwordx4 v%d, s[%d:%d], s%d offen offset:1024 lds" % (vDV, rV, rV + 3, soff))

    vDG = 239
    vFa = 224
    a.e("v_lshrrev_b32 v%d, 3, v%d" % (vT0, vLane))
    a.e("s_movk_i32 s%d, 3584" % sT0)
    a.e("v_mul_lo_u32 v%d, v%d, s%d" % (vT0, vT0, sT0))
    a.e("v_lshrrev_b32 v%d, 2, v%d" % (vT2, vLane))
    a.e("v_and_b32 v%d, 4, v%d" % (vT2, vT2))
    a.e("v_and_b32 v%d, 7, v%d" % (vT3, vLane))
    a.e("v_xor_b32 v%d, v%d, v%d" % (vT2, vT2, vT3))
    a.e("v_lshl_add_u32 v%d, v%d, 4, v%d" % (vDG, vT2, vT0))
    a.e("s_lshl_b32 s%d, s%d, 3" % (sRBk, sQB))
    a.e("s_add_u32 s%d, s%d, s%d" % (sRBk, sRBk, sW))
    a.e("s_lshl_b32 s%d, s%d, 15" % (sXB, sRBk))
    a.e("v_lshlrev_b32 v%d, 4, v%d" % (vOo, vLane))
    a.e("s_mul_i32 s%d, s%d, %d" % (sGB, sW, 16 * 3584))
    a.e("s_lshl_b32 s%d, s%d, 7" % (sT2, sHead))
    a.e("s_add_u32 s%d, s%d, s%d" % (sGB, sGB, sT2))
    a.e("s_lshl_b32 s%d, s%d, 11" % (sGL, sW))
    a.e("s_lshl_b32 s%d, s%d, 17" % (sWB, sW))
    a.e("s_lshl_b32 s%d, s%d, 8" % (sT2, sHead))
    a.e("s_add_u32 s%d, s%d, s%d" % (sWB, sWB, sT2))
    a.e("s_lshl_b32 s%d, s%d, 12" % (sT3, sW))

    def dma_gu(q):
        for i in range(2):
            a.e("s_add_u32 s%d, s%d, %d" % (sT2, sGB, (128 * q + 8 * i) * 3584))
            a.e("s_add_u32 m0, s%d, %d" % (sGL, q * 32768 + i * 1024))
            a.e("s_nop 0")
            a.e("buffer_load_dwordx4 v%d, s[%d:%d], s%d offen lds" % (vDG, rWG, rWG + 3, sT2))
            a.e("s_add_u32 m0, s%d, %d" % (sGL, q * 32768 + 16384 + i * 1024))
            a.e("s_nop 0")
            a.e("buffer_load_dwordx4 v%d, s[%d:%d], s%d offen lds" % (vDG, rWU, rWU + 3, sT2))

    def dma_wq(q):
        for i in range(4):
            a.e("s_add_u32 s%d, s%d, %d" % (sT2, sWB, (128 * q + 4 * i) * 8192))
            a.e("s_add_u32 m0, s%d, %d" % (sT3, q * 32768 + i * 1024))
            a.e("s_nop 0")
            a.e("buffer_load_dwordx4 v%d, s[%d:%d], s%d offen lds" % (vDW, rWQ, rWQ + 3, sT2))

    for q in range(4):
        dma_gu(q)
        for g in range(2):
            a.e("s_add_u32 s%d, s%d, %d" % (sT2, sXB, (2 * q + g) * 4096))
            for i in range(4):
                ks = 8 * q + 4 * g + i
                a.e("buffer_load_dwordx4 %s, v%d, s[%d:%d], s%d offen offset:%d" % (vr(X + 4 * ks, 4), vOo, rXN, rXN + 3, sT2, i * 1024))
    a.e("s_mov_b32 s%d, s%d" % (sKoff, sT1))
    dma_k(2, sKoff)
    a.e("s_add_u32 s%d, s%d, 16384" % (sKoff, sKoff))
    dma_k(3, sKoff)
    a.e("s_add_u32 s%d, s%d, 16384" % (sKoff, sKoff))
    a.e("s_mov_b32 s%d, s%d" % (sVoff, sT1))
    a.e("s_lshl_b32 s%d, s%d, 18" % (sOB, sRBk))
    a.e("s_lshl_b32 s%d, s%d, 13" % (sT2, sHead))
    a.e("s_add_u32 s%d, s%d, s%d" % (sOB, sOB, sT2))
    a.e("s_mul_i32 s%d, s%d, %d" % (sHB, sRBk, 112 * 1024))
    a.e("s_lshl_b32 s%d, s%d, 12" % (sT2, sHead))
    a.e("s_add_u32 s%d, s%d, s%d" % (sHB, sHB, sT2))
    tr_lane_off(a, vT2, vLane, vT0, vT1)
    a.e("v_bfe_u32 v%d, v%d, 2, 2" % (vT1, vLane))
    a.e("v_lshrrev_b32 v%d, 5, v%d" % (vT0, vLane))
    a.e("v_lshl_add_u32 v%d, v%d, 3, v%d" % (vT3, vT0, vT1))
    a.e("v_lshl_add_u32 v%d, v%d, 7, v%d" % (vT4, vT3, vT2))
    a.e("v_lshrrev_b32 v%d, 1, v%d" % (vFa + 3, vT1))
    a.e("v_lshlrev_b32 v%d, 6, v%d" % (vFa + 3, vFa + 3))
    a.e("v_add_u32 v%d, v%d, v%d" % (vFa + 0, vT4, vFa + 3))
    a.e("v_xor_b32 v%d, 64, v%d" % (vFa + 3, vFa + 3))
    a.e("v_add_u32 v%d, v%d, v%d" % (vFa + 1, vT4, vFa + 3))
    a.e("v_add_u32 v%d, 0x4000, v%d" % (vFa + 2, vFa + 0))
    a.e("v_add_u32 v%d, 0x4000, v%d" % (vFa + 3, vFa + 1))
    a.e("v_lshl_add_u32 v%d, v%d, 8, v%d" % (vT3, vT3, vT2))
    a.e("v_lshl_add_u32 v%d, v%d, 2, v%d" % (vT4, vT0, vT1))
    a.e("v_lshl_add_u32 v%d, v%d, 8, v%d" % (vT4, vT4, vT2))
    for db in range(4):
        a.e("v_xor_b32 v%d, %d, v%d" % (vT2, db, vT1))
        a.e("v_lshlrev_b32 v%d, 6, v%d" % (vT2, vT2))
        a.e("v_add_u32 v%d, v%d, v%d" % (vWa + db, vT3, vT2))
        a.e("v_add_u32 v%d, v%d, v%d" % (vVa + db, vT4, vT2))
    a.e("s_mov_b32 s%d, %s" % (sC, f32(math.log2(math.e) / math.sqrt(DH))))
    stamp()
    ACC4 = 160
    PFR = 128
    NP = 8
    PDQ = 5
    pctr = [0]

    def gemm_quarter(qt, addr, rowbytes):
        seq = [(ks, b) for ks in range(8 * qt, 8 * qt + 8) for b in range(4)]
        base = pctr[0]

        def pfrag(n):
            return PFR + 4 * ((base + n) % NP)

        def pissue(n):
            ks, b = seq[n]
            for t in range(2):
                off = (qt * 32768 + (16 * (ks - 8 * qt) + 4 * t) * rowbytes) & 0xffff
                a.lds("ds_read_b64_tr_b16 %s, v%d offset:%d" % (vr(pfrag(n) + 2 * t, 2), addr + b, off), ("q", base + n))

        for n in range(PDQ):
            pissue(n)
        for n in range(len(seq)):
            if n + PDQ < len(seq):
                pissue(n + PDQ)
            ks, b = seq[n]
            a.wait_lds(("q", base + n))
            acc = ACC4 + 16 * b
            a.e("v_mfma_f32_32x32x16_bf16 %s, %s, %s, %s" % (vr(acc, 16), vr(pfrag(n), 4), vr(X + 4 * ks, 4), "0" if ks == 0 else vr(acc, 16)))
        pctr[0] += len(seq)

    for qt in range(4):
        a.e("s_waitcnt vmcnt(%d)" % (40, 28, 20, 12)[qt])
        a.e("s_barrier")
        if qt >= 1:
            dma_wq(qt - 1)
        if qt == 2:
            for b in range(4):
                a.e("v_add_u32 v%d, 0x10000, v%d" % (vFa + b, vFa + b))
        gemm_quarter(qt, vFa, 128)
    a.e("s_nop 15")
    a.e("s_nop 3")
    KK = -2.0 * math.sqrt(2.0 / math.pi) * math.log2(math.e)
    a.e("s_mov_b32 s%d, %s" % (sT2, f32(KK * 0.044715)))
    a.e("v_mov_b32 v%d, %s" % (vT4, f32(KK)))
    for cs in range(2):
        G = ACC4 + 16 * cs
        U = ACC4 + 32 + 16 * cs
        for p in range(8):
            g0, g1, u0, u1 = G + 2 * p, G + 2 * p + 1, U + 2 * p, U + 2 * p + 1
            round_bf16_pair(a, g0, g1, g0, g1, vT0)
            round_bf16_pair(a, u0, u1, u0, u1, vT0)
            for g, t in ((g0, vT0), (g1, vT1)):
                a.e("v_mul_f32 v%d, v%d, v%d" % (t, g, g))
                a.e("v_fma_f32 v%d, v%d, s%d, v%d" % (t, t, sT2, vT4))
                a.e("v_mul_f32 v%d, v%d, v%d" % (t, t, g))
            a.e("v_exp_f32 v%d, v%d" % (vT0, vT0))
            a.e("v_exp_f32 v%d, v%d" % (vT1, vT1))
            a.e("s_nop 0")
            a.e("v_add_f32 v%d, 1.0, v%d" % (vT0, vT0))
            a.e("v_add_f32 v%d, 1.0, v%d" % (vT1, vT1))
            a.e("v_rcp_f32 v%d, v%d" % (vT0, vT0))
            a.e("v_rcp_f32 v%d, v%d" % (vT1, vT1))
            a.e("s_nop 0")
            a.e("v_mul_f32 v%d, v%d, v%d" % (g0, g0, vT0))
            a.e("v_mul_f32 v%d, v%d, v%d" % (g1, g1, vT1))
            round_bf16_pair(a, g0, g1, g0, g1, vT0)
            a.e("v_mul_f32 v%d, v%d, v%d" % (g0, g0, u0))
            a.e("v_mul_f32 v%d, v%d, v%d" % (g1, g1, u1))
            a.e("v_cvt_pk_bf16_f32 v%d, v%d, v%d" % (G + p, g0, g1))
        a.e("buffer_store_dwordx4 %s, v%d, s[%d:%d], s%d offen offset:%d" % (vr(G, 4), vOo, rH, rH + 3, sHB, cs * 2048))
        a.e("buffer_store_dwordx4 %s, v%d, s[%d:%d], s%d offen offset:%d" % (vr(G + 4, 4), vOo, rH, rH + 3, sHB, cs * 2048 + 1024))
    stamp()
    for qt in range(4):
        a.e("s_waitcnt vmcnt(%d)" % (12, 12, 12, 4)[qt])
        a.e("s_barrier")
        if qt == 0:
            dma_wq(3)
        if qt == 1:
            for t in range(2):
                dma_v(t, sVoff)
                a.e("s_add_u32 s%d, s%d, 16384" % (sVoff, sVoff))
        if qt == 2:
            for db in range(4):
                a.e("v_add_u32 v%d, 0x10000, v%d" % (vWa + db, vWa + db))
        gemm_quarter(qt, vWa, 256)
    a.e("s_nop 15")
    a.e("s_nop 3")
    for db in range(4):
        for p in range(8):
            a.e("v_mul_f32 v%d, s%d, v%d" % (ACC4 + 16 * db + 2 * p, sC, ACC4 + 16 * db + 2 * p))
            a.e("v_mul_f32 v%d, s%d, v%d" % (ACC4 + 16 * db + 2 * p + 1, sC, ACC4 + 16 * db + 2 * p + 1))
            a.e("v_cvt_pk_bf16_f32 v%d, v%d, v%d" % (Q + 8 * db + p, ACC4 + 16 * db + 2 * p, ACC4 + 16 * db + 2 * p + 1))
    a.e("v_lshrrev_b32 v%d, 5, v%d" % (vT0, vLane))
    a.e("v_and_b32 v%d, 31, v%d" % (vT1, vLane))
    a.e("v_and_b32 v%d, 15, v%d" % (vT2, vLane))
    a.e("v_xor_b32 v%d, v%d, v%d" % (vT2, vT2, vT0))
    a.e("v_lshlrev_b32 v%d, 8, v%d" % (vT1, vT1))
    a.e("v_add_u32 v%d, 0x%x, v%d" % (vT1, LDS_K, vT1))
    for ks in range(8):
        a.e("v_xor_b32 v%d, %d, v%d" % (vT3, 2 * ks, vT2))
        a.e("v_lshl_add_u32 v%d, v%d, 4, v%d" % (vKa + ks, vT3, vT1))
    a.e("s_waitcnt vmcnt(0)")
    a.e("s_barrier")
    dma_k(0, sKoff)
    a.e("s_add_u32 s%d, s%d, 16384" % (sKoff, sKoff))
    a.e("s_add_u32 m0, s%d, %d" % (sM0K, 1 * 16384))
    a.e("s_nop 0")
    a.e("buffer_load_dwordx4 v%d, s[%d:%d], s%d offen lds" % (vDK0, rK, rK + 3, sKoff))
    for i in range(64):
        a.e("v_mov_b32 v%d, 0" % (O + i))
    NEGM = 192
    for i in range(16):
        a.e("v_mov_b32 v%d, 0" % (NEGM + i))
    a.e("v_mov_b32 v%d, 0" % vL0)
    a.e("v_mov_b32 v%d, 0" % vL1)

    fr_ctr = [0]

    def kread(kslot, m):
        kb, ks = m >> 3, m & 7
        f = FR + 4 * (fr_ctr[0] % NFR)
        tag = ("f", fr_ctr[0])
        fr_ctr[0] += 1
        a.lds("ds_read_b128 %s, v%d offset:%d" % (vr(f, 4), vKa + ks, kslot * 16384 + kb * 8192), tag)
        return (f, tag)

    def vread(vslot, m):
        s_, db = m >> 2, m & 3
        f = FR + 4 * (fr_ctr[0] % NFR)
        tag = ("f", fr_ctr[0])
        fr_ctr[0] += 1
        for t in range(2):
            a.lds("ds_read_b64_tr_b16 %s, v%d offset:%d" % (vr(f + 2 * t, 2), vVa + db, vslot * 16384 + (16 * s_ + 8 * t) * 256), tag)
        return (f, tag)

    def softmax_ops(cur):
        ops = []
        for g in range(8):
            b = cur + 4 * g
            for i in range(4):
                ops.append("v_exp_f32 v%d, v%d" % (b + i, b + i))
            for i in range(4):
                l = vL0 if i % 2 == 0 else vL1
                ops.append("v_add_f32 v%d, v%d, v%d" % (l, l, b + i))
            ops.append("v_cvt_pk_bf16_f32 v%d, v%d, v%d" % (cur + 2 * g, b, b + 1))
            ops.append("v_cvt_pk_bf16_f32 v%d, v%d, v%d" % (cur + 2 * g + 1, b + 2, b + 3))
        return ops

    def max_ops(nxt):
        ops = []
        ops.append("v_max3_f32 v%d, v%d, v%d, v%d" % (vT0, nxt + 0, nxt + 1, nxt + 2))
        ops.append("v_max3_f32 v%d, v%d, v%d, v%d" % (vT1, nxt + 16, nxt + 17, nxt + 18))
        for i in range(3, 15, 2):
            ops.append("v_max3_f32 v%d, v%d, v%d, v%d" % (vT0, vT0, nxt + i, nxt + i + 1))
            ops.append("v_max3_f32 v%d, v%d, v%d, v%d" % (vT1, vT1, nxt + 16 + i, nxt + 16 + i + 1))
        ops.append("v_max3_f32 v%d, v%d, v%d, v%d" % (vT0, vT0, nxt + 15, nxt + 31))
        ops.append("v_max_f32 v%d, v%d, v%d" % (vT0, vT0, vT1))
        ops.append("v_mov_b32 v%d, v%d" % (vT1, vT0))
        ops.append("s_nop 1")
        ops.append("v_permlane32_swap_b32 v%d, v%d" % (vT0, vT1))
        ops.append("s_nop 1")
        ops.append("v_max_f32 v%d, v%d, v%d" % (vT0, vT0, vT1))
        return ops

    rescale_sites = []

    def rescale_body(buf, first):
        if not first:
            a.e("v_max_f32 v%d, 0, v%d" % (vT0, vT0))
        a.e("v_sub_f32 v%d, 0, v%d" % (vT2, vT0))
        a.e("v_exp_f32 v%d, v%d" % (vT2, vT2))
        a.e("v_sub_f32 v%d, v%d, v%d" % (NEGM, NEGM, vT0))
        for i in range(1, 16):
            a.e("v_mov_b32 v%d, v%d" % (NEGM + i, NEGM))
        for i in range(32):
            a.e("v_sub_f32 v%d, v%d, v%d" % (buf + i, buf + i, vT0))
        if not first:
            for i in range(64):
                a.e("v_mul_f32 v%d, v%d, v%d" % (O + i, O + i, vT2))
            a.e("v_mul_f32 v%d, v%d, v%d" % (vL0, vL0, vT2))
            a.e("v_mul_f32 v%d, v%d, v%d" % (vL1, vL1, vT2))
        a.e("s_nop 1")

    def rescale_check(buf):
        n = a.nlabel
        a.nlabel += 1
        a.e("v_cmp_lt_f32 vcc, %s, v%d" % (f32(float(P('A_T', 48))), vT0))
        a.e("s_cbranch_vccnz L_resc_%d" % n)
        a.label("L_resc_ret_%d" % n)
        rescale_sites.append((n, buf))

    PD = P('A_PD', 4)
    q = [kread(2, m) for m in range(PD)]
    for m in range(16):
        if m + PD < 16:
            q.append(kread(2, m + PD))
        f, tag = q[m]
        a.wait_lds(tag)
        kb, ks = m >> 3, m & 7
        acc = SB[0] + 16 * kb
        a.e("v_mfma_f32_32x32x16_bf16 %s, %s, %s, %s" % (vr(acc, 16), vr(f, 4), vr(Q + 4 * ks, 4), "0" if ks == 0 else vr(acc, 16)))
    a.e("s_nop 15")
    a.e("s_nop 3")
    for op in max_ops(SB[0]):
        a.e(op)
    rescale_body(SB[0], True)
    carry = [kread(3, m) for m in range(PD)]
    a.e("s_mov_b32 s%d, 0" % sJ)
    stamp()
    if STAMP:
        a.e("s_memrealtime s[80:81]")
    a.nolds = True
    a.label("L_attn_loop")
    UNR = 4
    for u in range(UNR):
        cur, nxt = SB[u & 1], SB[(u + 1) & 1]
        kslot = (u + 1 + 2) & 3
        kslot_n = (u + 2 + 2) & 3
        vslot = u & 3
        sm = softmax_ops(cur)
        mx = max_ops(nxt)
        fill = [[] for _ in range(32)]
        CE = P('A_CE', 16)
        cost = lambda op: CE if op.startswith('v_exp') else (2 if op.startswith('s_nop') else 4)
        NS = P('A_NS', 27)
        tot = sum(cost(o) for o in sm)
        cum = 0
        for op in sm:
            fill[min(int((cum + cost(op) / 2) * NS / tot), NS - 1)].append(op)
            cum += cost(op)
        tot = sum(cost(o) for o in mx)
        cum = 0
        for op in mx:
            fill[min(NS + int((cum + cost(op) / 2) * (32 - NS) / tot), 31)].append(op)
            cum += cost(op)
        for t in range(32):
            for op in fill[t]:
                if op.startswith('v_cvt'):
                    dreg = int(op.split()[1].strip(',')[1:]) - cur
                    assert t <= 16 + 4 * (dreg // 4) - 1, (t, op)
        frags = list(carry)
        carry = []
        dpos = {P('A_D0', 1): 1, P('A_D1', 7): 2, P('A_D2', 13): 3}
        for m in range(32):
            mm = m + PD
            if mm < 16:
                frags.append(kread(kslot, mm))
            elif mm < 32:
                frags.append(vread(vslot, mm - 16))
            else:
                carry.append(kread(kslot_n, mm - 32))
            f, tag = frags[m]
            a.wait_lds(tag)
            if m < 16:
                kb, ks = m >> 3, m & 7
                acc = nxt + 16 * kb
                a.e("v_mfma_f32_32x32x16_bf16 %s, %s, %s, %s" % (vr(acc, 16), vr(f, 4), vr(Q + 4 * ks, 4), vr(NEGM, 16) if ks == 0 else vr(acc, 16)))
            else:
                s_, db = (m - 16) >> 2, (m - 16) & 3
                acc = O + 16 * db
                a.e("v_mfma_f32_32x32x16_bf16 %s, %s, %s, %s" % (vr(acc, 16), vr(f, 4), vr(cur + 4 * s_, 4), vr(acc, 16)))
            for op in fill[m]:
                if P('X_NOVALU', 0) and not op.startswith('s_'):
                    continue
                if P('X_NOEXP', 0) and op.startswith('v_exp'):
                    continue
                a.e(op)
            if m in dpos and not P('X_NODMA', 0):
                pc = dpos[m]
                if pc == 1:
                    a.e("buffer_load_dwordx4 v%d, s[%d:%d], s%d offen offset:1024 lds" % (vDK1, rK, rK + 3, sKoff))
                    a.e("s_add_u32 s%d, s%d, 16384" % (sKoff, sKoff))
                elif pc == 2:
                    a.e("s_add_u32 m0, s%d, %d" % (sM0V, ((u + 2) & 3) * 16384))
                    a.e("s_nop 0")
                    a.e("buffer_load_dwordx4 v%d, s[%d:%d], s%d offen lds" % (vDV, rV, rV + 3, sVoff))
                else:
                    a.e("buffer_load_dwordx4 v%d, s[%d:%d], s%d offen offset:1024 lds" % (vDV, rV, rV + 3, sVoff))
                    a.e("s_add_u32 s%d, s%d, 16384" % (sVoff, sVoff))
            if m == 32 - PD - 1:
                if not P('X_NOBAR2', 0):
                    a.e("s_waitcnt vmcnt(4)")
                    a.e("s_barrier")
            if m == 32 - PD + 1 and not P('X_NODMA', 0):
                a.e("s_add_u32 m0, s%d, %d" % (sM0K, ((u + 4 + 2) & 3) * 16384))
                a.e("s_nop 0")
                a.e("buffer_load_dwordx4 v%d, s[%d:%d], s%d offen lds" % (vDK0, rK, rK + 3, sKoff))
        if u == UNR - 1:
            a.e("s_cmp_eq_u32 s%d, %d" % (sJ, 32 - UNR))
            a.e("s_cbranch_scc1 L_attn_done")
        rescale_check(nxt)
    a.e("s_add_u32 s%d, s%d, %d" % (sJ, sJ, UNR))
    a.e("s_branch L_attn_loop")
    a.label("L_attn_done")
    a.nolds = False
    stamp()
    if STAMP:
        a.e("s_memrealtime s[82:83]")
    a.wait_lds_all()
    a.e("s_nop 15")
    a.e("s_nop 3")
    a.e("v_add_f32 v%d, v%d, v%d" % (vL0, vL0, vL1))
    a.e("v_mov_b32 v%d, v%d" % (vT1, vL0))
    a.e("s_nop 1")
    a.e("v_permlane32_swap_b32 v%d, v%d" % (vL0, vT1))
    a.e("s_nop 1")
    a.e("v_add_f32 v%d, v%d, v%d" % (vL0, vL0, vT1))
    a.e("v_rcp_f32 v%d, v%d" % (vL0, vL0))
    a.e("s_nop 0")
    for db in range(4):
        for i in range(16):
            a.e("v_mul_f32 v%d, v%d, v%d" % (O + 16 * db + i, O + 16 * db + i, vL0))
        for p in range(8):
            a.e("v_cvt_pk_bf16_f32 v%d, v%d, v%d" % (O + 16 * db + p, O + 16 * db + 2 * p, O + 16 * db + 2 * p + 1))
        if db == 2:
            a.e("s_add_u32 s%d, s%d, 4096" % (sOB, sOB))
        a.e("buffer_store_dwordx4 %s, v%d, s[%d:%d], s%d offen offset:%d" % (vr(O + 16 * db, 4), vOo, rO, rO + 3, sOB, (db & 1) * 2048))
        a.e("buffer_store_dwordx4 %s, v%d, s[%d:%d], s%d offen offset:%d" % (vr(O + 16 * db + 4, 4), vOo, rO, rO + 3, sOB, (db & 1) * 2048 + 1024))
    if STAMP:
        stamp()
        a.e("s_waitcnt vmcnt(0) lgkmcnt(0)")
        stamp()
        a.e("s_waitcnt lgkmcnt(0)")
        make_srd(a, 88, sWS, sWS + 1, 1 << 20, 0x3000000)
        a.e("s_lshl_b32 s%d, s2, 3" % sT0)
        a.e("s_add_u32 s%d, s%d, s%d" % (sT0, sT0, sW))
        a.e("s_lshl_b32 s%d, s%d, 6" % (sT0, sT0))
        a.e("v_mov_b32 v%d, s%d" % (vT0, sT0))
        a.e("s_sub_u32 s%d, s82, s80" % (60 + 2 * stamp_n[0]))
        for i in range(stamp_n[0] + 1):
            a.e("v_mov_b32 v%d, s%d" % (vT1, 60 + 2 * i))
            a.e("buffer_store_dword v%d, v%d, s[88:91], 0 offen offset:%d" % (vT1, vT0, 4 * i))
            a.e("s_nop 1")
    a.e("s_branch L_attn_end")
    for n, buf in rescale_sites:
        a.label("L_resc_%d" % n)
        a.e("s_nop 15")
        a.e("s_nop 3")
        rescale_body(buf, False)
        a.e("s_branch L_resc_ret_%d" % n)
    a.label("L_attn_end")
    a.e("s_endpgm")
    return name, (NWG, 512, 163840), 256


def gen_out(a):
    name = "outp_kernel"
    kernel_header(a, name)
    NWG = 256
    sX, sWO, sWD, sOut, sWS = 4, 6, 8, 10, 12
    rX, rWO, rWD, rOut, rOW, rHW = 16, 20, 24, 28, 32, 36
    sTB, sNB, sW, sT0, sT1, sT2 = 40, 41, 42, 43, 44, 45
    sLB = 46
    sAct = [47, 48]
    sWt = [49, 50]
    a.e("s_cmp_ge_u32 s2, %d" % NWG)
    a.e("s_cbranch_scc1 L_outp_end")
    a.e("s_load_dwordx2 s[%d:%d], s[0:1], 0" % (sX, sX + 1))
    a.e("s_load_dwordx2 s[%d:%d], s[0:1], 32" % (sWO, sWO + 1))
    a.e("s_load_dwordx2 s[%d:%d], s[0:1], 64" % (sWD, sWD + 1))
    a.e("s_load_dwordx2 s[%d:%d], s[0:1], 72" % (sOut, sOut + 1))
    a.e("s_load_dwordx2 s[%d:%d], s[0:1], 88" % (sWS, sWS + 1))
    NST = P('C_NST', 4)
    ACC = [0, 64]
    FB = 128
    FA = FB + 16 * NST
    vb = FA + 16
    vLane, vT0, vT1, vT2, vT3, vT4 = vb, vb + 1, vb + 2, vb + 3, vb + 4, vb + 5
    vAa = vb + 6
    vDW = vb + 8
    vL16 = vb + 9
    vXo = vb + 10
    vR = vb + 11
    XR = vb + 12
    NV = vb + 16
    a.e("v_and_b32 v%d, 63, v0" % vLane)
    a.e("v_lshrrev_b32 v%d, 6, v0" % vT0)
    a.e("s_and_b32 s%d, s2, 31" % sTB)
    a.e("s_lshr_b32 s%d, s2, 5" % sNB)
    a.e("v_readfirstlane_b32 s%d, v%d" % (sW, vT0))
    a.e("s_waitcnt lgkmcnt(0)")
    make_srd(a, rX, sX, sX + 1, S * D * 2)
    make_srd(a, rWO, sWO, sWO + 1, H * DH * D * 2)
    make_srd(a, rWD, sWD, sWD + 1, DF * D * 2)
    make_srd(a, rOut, sOut, sOut + 1, S * D * 2)
    make_srd(a, rOW, sWS, sWS + 1, O_BYTES, WS_O)
    make_srd(a, rHW, sWS, sWS + 1, H_BYTES, WS_H)
    a.e("s_mul_i32 s%d, s%d, %d" % (sLB, sW, NST * 4096))
    a.e("v_lshlrev_b32 v%d, 4, v%d" % (vL16, vLane))
    a.e("v_lshrrev_b32 v%d, 3, v%d" % (vT0, vLane))
    a.e("v_and_b32 v%d, 7, v%d" % (vT1, vLane))
    a.e("v_lshrrev_b32 v%d, 2, v%d" % (vT2, vLane))
    a.e("v_and_b32 v%d, 4, v%d" % (vT2, vT2))
    a.e("v_xor_b32 v%d, v%d, v%d" % (vT2, vT2, vT1))
    a.e("v_lshlrev_b32 v%d, 4, v%d" % (vT2, vT2))
    a.e("v_lshl_add_u32 v%d, v%d, 10, v%d" % (vDW, vT0, vT2))
    tr_lane_off(a, vT3, vLane, vT0, vT1)
    a.e("v_lshrrev_b32 v%d, 5, v%d" % (vT2, vLane))
    a.e("v_bfe_u32 v%d, v%d, 2, 2" % (vT1, vLane))
    a.e("v_lshl_add_u32 v%d, v%d, 3, v%d" % (vT0, vT2, vT1))
    a.e("v_lshl_add_u32 v%d, v%d, 7, v%d" % (vT3, vT0, vT3))
    a.e("v_add_u32 v%d, s%d, v%d" % (vT3, sLB, vT3))
    a.e("v_lshrrev_b32 v%d, 1, v%d" % (vT1, vT1))
    a.e("v_lshlrev_b32 v%d, 6, v%d" % (vT1, vT1))
    a.e("v_add_u32 v%d, v%d, v%d" % (vAa + 0, vT3, vT1))
    a.e("v_xor_b32 v%d, 64, v%d" % (vT1, vT1))
    a.e("v_add_u32 v%d, v%d, v%d" % (vAa + 1, vT3, vT1))
    RBS = (256 * 1024, 112 * 1024)
    for mi in range(2):
        a.e("s_mul_i32 s%d, s%d, %d" % (sAct[mi], sTB, 2 * RBS[mi]))
        a.e("s_lshl_b32 s%d, s%d, 11" % (sT0, sW))
        a.e("s_add_u32 s%d, s%d, s%d" % (sAct[mi], sAct[mi], sT0))
        a.e("s_lshl_b32 s%d, s%d, 15" % (sWt[mi], sW))
        a.e("s_lshl_b32 s%d, s%d, 7" % (sT0, sNB))
        a.e("s_add_u32 s%d, s%d, s%d" % (sWt[mi], sWt[mi], sT0))
    chunks = [(0, c) for c in range(16)] + [(1, c) for c in range(7)]

    def issue(n):
        mi, c = chunks[n]
        st = n % NST
        rAct = (rOW, rHW)[mi]
        rWt = (rWO, rWD)[mi]
        for i in range(4):
            a.e("s_add_u32 s%d, s%d, %d" % (sT0, sWt[mi], (c * 256 + 8 * i) * 1024))
            a.e("s_add_u32 m0, s%d, %d" % (sLB, st * 4096 + i * 1024))
            a.e("s_nop 0")
            a.e("buffer_load_dwordx4 v%d, s[%d:%d], s%d offen lds" % (vDW, rWt, rWt + 3, sT0))
        for tb in range(2):
            a.e("s_add_u32 s%d, s%d, %d" % (sT0, sAct[mi], c * 16384 + tb * RBS[mi]))
            for ks in range(2):
                a.e("buffer_load_dwordx4 %s, v%d, s[%d:%d], s%d offen offset:%d" % (vr(FB + 16 * st + 8 * ks + 4 * tb, 4), vL16, rAct, rAct + 3, sT0, ks * 1024))

    for n in range(NST - 1):
        issue(n)
    for n in range(len(chunks)):
        if n + NST - 1 < len(chunks):
            issue(n + NST - 1)
        left = min(NST - 1, len(chunks) - 1 - n)
        a.e("s_waitcnt vmcnt(%d)" % (8 * left))
        mi, c = chunks[n]
        st = n % NST
        for ks in range(2):
            for nb in range(2):
                for t in range(2):
                    a.lds("ds_read_b64_tr_b16 %s, v%d offset:%d" % (vr(FA + 8 * ks + 4 * nb + 2 * t, 2), vAa + nb, st * 4096 + (16 * ks + 4 * t) * 128), ("c", n, ks))
        for ks in range(2):
            a.wait_lds(("c", n, ks))
            for nb in range(2):
                for tb in range(2):
                    d = ACC[mi] + 16 * (nb * 2 + tb)
                    a.e("v_mfma_f32_32x32x16_bf16 %s, %s, %s, %s" % (vr(d, 16), vr(FA + 8 * ks + 4 * nb, 4), vr(FB + 16 * st + 8 * ks + 4 * tb, 4), "0" if (c == 0 and ks == 0) else vr(d, 16)))
    a.e("s_nop 15")
    a.e("s_nop 3")
    a.e("s_bfe_u32 s%d, s%d, 0x10001" % (sT0, sW))
    a.e("s_lshl_b32 s%d, s%d, 5" % (sT0, sT0))
    a.e("s_lshl_b32 s%d, s%d, 6" % (sT1, sTB))
    a.e("s_add_u32 s%d, s%d, s%d" % (sT0, sT0, sT1))
    a.e("v_and_b32 v%d, 31, v%d" % (vT0, vLane))
    a.e("v_add_u32 v%d, s%d, v%d" % (vT0, sT0, vT0))
    a.e("v_lshrrev_b32 v%d, 5, v%d" % (vT1, vLane))
    a.e("v_lshlrev_b32 v%d, 4, v%d" % (vT1, vT1))
    a.e("v_lshl_add_u32 v%d, v%d, 10, v%d" % (vXo, vT0, vT1))
    a.e("s_lshr_b32 s%d, s%d, 2" % (sT0, sW))
    a.e("s_lshl_b32 s%d, s%d, 6" % (sT0, sT0))
    a.e("s_and_b32 s%d, s%d, 1" % (sT1, sW))
    a.e("s_lshl_b32 s%d, s%d, 5" % (sT1, sT1))
    a.e("s_add_u32 s%d, s%d, s%d" % (sT0, sT0, sT1))
    a.e("s_lshl_b32 s%d, s%d, 7" % (sT1, sNB))
    a.e("s_add_u32 s%d, s%d, s%d" % (sT0, sT0, sT1))
    a.e("v_add_u32 v%d, s%d, v%d" % (vXo, sT0, vXo))
    a.e("buffer_load_dwordx4 %s, v%d, s[%d:%d], 0 offen" % (vr(XR, 4), vXo, rX, rX + 3))
    a.e("s_lshl_b32 s%d, s%d, 14" % (sT0, sW))
    a.e("v_add_u32 v%d, s%d, v%d" % (vT0, sT0, vL16))
    a.e("s_lshl_b32 s%d, s%d, 11" % (sT0, sW))
    a.e("v_add_u32 v%d, s%d, v%d" % (vR, sT0, vL16))
    a.e("v_add_u32 v%d, 0x10000, v%d" % (vT4, vR))
    RES = [FB, FB + 8]
    TMP = FB + 16
    for part in range(2):
        a.e("s_barrier")
        for i in range(16):
            a.e("ds_write_b128 v%d, %s offset:%d" % (vT0, vr(ACC[part] + 4 * i, 4), i * 1024))
        a.e("s_waitcnt lgkmcnt(0)")
        a.e("s_barrier")
        for src in range(8):
            for i in range(2):
                a.e("ds_read_b128 %s, v%d offset:%d" % (vr(ACC[part] + 8 * src + 4 * i, 4), vR if src < 4 else vT4, (src & 3) * 16384 + i * 1024))
            if src == 6:
                a.e("s_waitcnt lgkmcnt(0)")
        a.e("s_waitcnt lgkmcnt(0)")
        B = ACC[part]
        for i in range(8):
            a.e("v_add_f32 v%d, v%d, v%d" % (B + i, B + i, B + 8 + i))
            a.e("v_add_f32 v%d, v%d, v%d" % (B + 16 + i, B + 16 + i, B + 24 + i))
            a.e("v_add_f32 v%d, v%d, v%d" % (B + 32 + i, B + 32 + i, B + 40 + i))
            a.e("v_add_f32 v%d, v%d, v%d" % (B + 48 + i, B + 48 + i, B + 56 + i))
        for i in range(8):
            a.e("v_add_f32 v%d, v%d, v%d" % (B + i, B + i, B + 16 + i))
            a.e("v_add_f32 v%d, v%d, v%d" % (B + 32 + i, B + 32 + i, B + 48 + i))
        for i in range(8):
            a.e("v_add_f32 v%d, v%d, v%d" % (B + i, B + i, B + 32 + i))
    a.e("s_waitcnt vmcnt(0)")
    a.e("s_mov_b32 s%d, %s" % (sT2, f32(-math.log2(math.e))))
    for p in range(4):
        s0, s1, f0, f1 = 2 * p, 2 * p + 1, 64 + 2 * p, 64 + 2 * p + 1
        round_bf16_pair(a, s0, s1, s0, s1, vT0)
        round_bf16_pair(a, f0, f1, f0, f1, vT0)
        a.e("v_mul_f32 v%d, s%d, v%d" % (vT0, sT2, f0))
        a.e("v_mul_f32 v%d, s%d, v%d" % (vT1, sT2, f1))
        a.e("v_exp_f32 v%d, v%d" % (vT0, vT0))
        a.e("v_exp_f32 v%d, v%d" % (vT1, vT1))
        a.e("s_nop 0")
        a.e("v_add_f32 v%d, 1.0, v%d" % (vT0, vT0))
        a.e("v_add_f32 v%d, 1.0, v%d" % (vT1, vT1))
        a.e("v_rcp_f32 v%d, v%d" % (vT0, vT0))
        a.e("v_rcp_f32 v%d, v%d" % (vT1, vT1))
        a.e("s_nop 0")
        a.e("v_mul_f32 v%d, v%d, v%d" % (f0, f0, vT0))
        a.e("v_mul_f32 v%d, v%d, v%d" % (f1, f1, vT1))
        round_bf16_pair(a, f0, f1, f0, f1, vT0)
        a.e("v_mul_f32 v%d, v%d, v%d" % (s0, s0, f0))
        a.e("v_mul_f32 v%d, v%d, v%d" % (s1, s1, f1))
        round_bf16_pair(a, s0, s1, s0, s1, vT0)
        a.e("v_lshlrev_b32 v%d, 16, v%d" % (vT0, XR + p))
        a.e("v_and_b32 v%d, 0xffff0000, v%d" % (vT1, XR + p))
        a.e("v_add_f32 v%d, v%d, v%d" % (s0, s0, vT0))
        a.e("v_add_f32 v%d, v%d, v%d" % (s1, s1, vT1))
        a.e("v_cvt_pk_bf16_f32 v%d, v%d, v%d" % (XR + p, s0, s1))
    a.e("buffer_store_dwordx4 %s, v%d, s[%d:%d], 0 offen" % (vr(XR, 4), vXo, rOut, rOut + 3))
    a.label("L_outp_end")
    a.e("s_endpgm")
    return name, (NWG, 512, 131072), NV


def main():
    a = Asm()
    ks = []
    for g in (gen_ln, gen_attn, gen_out):
        a.pend = []
        ks.append(g(a))
    head = []
    for name, (nwg, blk, lds), _ in ks:
        head.append("; @launch kernel=%s grid=(%d,1,1) block=(%d,1,1) lds=%d" % (name, nwg, blk, lds))
    head.append('.amdgcn_target "amdgcn-amd-amdhsa--gfx950"')
    head.append(".text")
    tail = ['.section .rodata,"a"']
    for name, _, vg in ks:
        tail.append(".p2align 6")
        tail.append(kernel_desc(name, vg))
    open(OUT, "w").write("\n".join(head + a.lines + tail) + "\n")


if __name__ == "__main__":
    main()
```

```python
import math, struct, sys, os
P = lambda k, d: int(os.environ.get(k, d))

OUT = os.environ.get("GEN_OUT", "recurrent_scan__mha_block_cached__glu_gated_geglu__prompt.s")

S = 2048; D = 512; H = 32; DH = 128; DF = 1792
WS_XN = 0
WS_H = 0x200000
WS_O = 0x1000000
WS_W = 0x2000000
W_BYTES = 16 * 368 * 1024
XN_BYTES = S * D * 2
H_BYTES = S * DF * 2
O_BYTES = S * H * DH * 2


def f32(x):
    return "0x%08x" % struct.unpack("<I", struct.pack("<f", x))[0]


class Asm:
    def __init__(self):
        self.lines = []
        self.pend = []
        self.nlabel = 0
        self.nolds = False
        self.vpend = []

    def e(self, s):
        self.lines.append("    " + s)

    def c(self, s):
        self.lines.append("    ; " + s)

    def label(self, name):
        self.lines.append(name + ":")

    def raw(self, s):
        self.lines.append(s)

    def lds(self, text, tag):
        if P('X_NOLDS', 0) and self.nolds:
            return
        self.e(text)
        self.pend.append(tag)
        assert len(self.pend) <= 15, "too many outstanding lgkm ops"

    def wait_lds(self, tag):
        if tag not in self.pend:
            return
        idx = len(self.pend) - 1 - self.pend[::-1].index(tag)
        n = len(self.pend) - idx - 1
        self.e("s_waitcnt lgkmcnt(%d)" % n)
        self.pend = self.pend[idx + 1:]

    def vm(self, text, tag):
        self.e(text)
        self.vpend.append(tag)

    def wait_vm(self, tag):
        if tag not in self.vpend:
            return
        idx = len(self.vpend) - 1 - self.vpend[::-1].index(tag)
        n = len(self.vpend) - idx - 1
        self.e("s_waitcnt vmcnt(%d)" % n)
        self.vpend = self.vpend[idx + 1:]

    def wait_lds_all(self):
        if self.pend:
            self.e("s_waitcnt lgkmcnt(0)")
        self.pend = []


def vr(a, n):
    return "v[%d:%d]" % (a, a + n - 1)


def sr(a, n):
    return "s[%d:%d]" % (a, a + n - 1)


def make_srd(a, d, lo, hi, nbytes, add=0):
    if add:
        a.e("s_add_u32 s%d, s%d, 0x%x" % (d, lo, add))
        a.e("s_addc_u32 s%d, s%d, 0" % (d + 1, hi))
        a.e("s_and_b32 s%d, s%d, 0xffff" % (d + 1, d + 1))
    else:
        a.e("s_mov_b32 s%d, s%d" % (d, lo))
        a.e("s_and_b32 s%d, s%d, 0xffff" % (d + 1, hi))
    a.e("s_mov_b32 s%d, 0x%x" % (d + 2, nbytes))
    a.e("s_mov_b32 s%d, 0x00020000" % (d + 3))


def make_srd_s(a, d, lo, hi, nbytes, soff):
    a.e("s_add_u32 s%d, s%d, s%d" % (d, lo, soff))
    a.e("s_addc_u32 s%d, s%d, 0" % (d + 1, hi))
    a.e("s_and_b32 s%d, s%d, 0xffff" % (d + 1, d + 1))
    a.e("s_mov_b32 s%d, 0x%x" % (d + 2, nbytes))
    a.e("s_mov_b32 s%d, 0x00020000" % (d + 3))


def kernel_header(a, name):
    a.raw(".globl %s" % name)
    a.raw(".p2align 8")
    a.raw(".type %s,@function" % name)
    a.label(name)


def kernel_desc(name, vgpr, sgpr=102):
    acc = (vgpr + 3) // 4 * 4
    return """.amdhsa_kernel %s
  .amdhsa_next_free_vgpr %d
  .amdhsa_next_free_sgpr %d
  .amdhsa_accum_offset %d
  .amdhsa_group_segment_fixed_size 0
  .amdhsa_kernarg_size 96
  .amdhsa_user_sgpr_count 2
  .amdhsa_user_sgpr_kernarg_segment_ptr 1
  .amdhsa_system_sgpr_workgroup_id_x 1
.end_amdhsa_kernel""" % (name, vgpr, sgpr, acc)


def round_bf16_pair(a, d0, d1, s0, s1, tmp):
    a.e("v_cvt_pk_bf16_f32 v%d, v%d, v%d" % (tmp, s0, s1))
    a.e("v_lshlrev_b32 v%d, 16, v%d" % (d0, tmp))
    a.e("v_and_b32 v%d, 0xffff0000, v%d" % (d1, tmp))


def tr_lane_off(a, dst, vL, t0, t1):
    a.e("v_and_b32 v%d, 16, v%d" % (dst, vL))
    a.e("v_lshlrev_b32 v%d, 1, v%d" % (dst, dst))
    a.e("v_and_b32 v%d, 1, v%d" % (t0, vL))
    a.e("v_lshlrev_b32 v%d, 4, v%d" % (t0, t0))
    a.e("v_and_b32 v%d, 2, v%d" % (t1, vL))
    a.e("v_lshlrev_b32 v%d, 2, v%d" % (t1, t1))
    a.e("v_add3_u32 v%d, v%d, v%d, v%d" % (dst, dst, t0, t1))


def gen_ln(a):
    name = "lnorm_kernel"
    kernel_header(a, name)
    NLN = 512
    NWG = NLN
    sX, sWS = 4, 6
    rX, rXN = 8, 12
    sT0, sT1, sW = 16, 17, 18
    a.e("s_cmp_ge_u32 s2, %d" % NWG)
    a.e("s_cbranch_scc1 L_ln_end")
    a.e("s_load_dwordx2 s[%d:%d], s[0:1], 0" % (sX, sX + 1))
    a.e("s_load_dwordx2 s[%d:%d], s[0:1], 88" % (sWS, sWS + 1))
    vLane, vT0, vT1, vOff, vSt, vSum, vMean, vR = 1, 2, 3, 4, 5, 6, 7, 8
    XP = 12
    XU = 16
    a.e("v_and_b32 v%d, 63, v0" % vLane)
    a.e("v_lshrrev_b32 v%d, 6, v0" % vT0)
    a.e("s_lshl_b32 s%d, s2, 2" % sT0)
    a.e("v_readfirstlane_b32 s%d, v%d" % (sW, vT0))
    a.e("s_waitcnt lgkmcnt(0)")
    make_srd(a, rX, sX, sX + 1, S * D * 2)
    make_srd(a, rXN, sWS, sWS + 1, XN_BYTES)
    a.e("s_add_u32 s%d, s%d, s%d" % (sT0, sT0, sW))
    a.e("s_lshl_b32 s%d, s%d, 10" % (sT1, sT0))
    a.e("v_lshlrev_b32 v%d, 4, v%d" % (vOff, vLane))
    a.e("buffer_load_dwordx4 %s, v%d, s[%d:%d], s%d offen" % (vr(XP, 4), vOff, rX, rX + 3, sT1))
    a.e("v_lshrrev_b32 v%d, 1, v%d" % (vT0, vLane))
    a.e("v_lshlrev_b32 v%d, 10, v%d" % (vT0, vT0))
    a.e("v_and_b32 v%d, 1, v%d" % (vT1, vLane))
    a.e("v_lshl_add_u32 v%d, v%d, 9, v%d" % (vSt, vT1, vT0))
    a.e("s_lshr_b32 s%d, s%d, 5" % (sT1, sT0))
    a.e("s_lshl_b32 s%d, s%d, 15" % (sT1, sT1))
    a.e("s_and_b32 s%d, s%d, 31" % (sT0, sT0))
    a.e("s_lshl_b32 s%d, s%d, 4" % (sT0, sT0))
    a.e("s_add_u32 s%d, s%d, s%d" % (sT1, sT1, sT0))
    a.e("v_add_u32 v%d, s%d, v%d" % (vSt, sT1, vSt))
    a.e("s_waitcnt vmcnt(0)")
    for i in range(4):
        a.e("v_lshlrev_b32 v%d, 16, v%d" % (XU + 2 * i, XP + i))
        a.e("v_and_b32 v%d, 0xffff0000, v%d" % (XU + 2 * i + 1, XP + i))

    def reduce(v):
        for msk in (1, 2, 4, 8, 16):
            a.e("ds_swizzle_b32 v%d, v%d offset:0x%x" % (vT0, v, (msk << 10) | 0x1f))
            a.e("s_waitcnt lgkmcnt(0)")
            a.e("v_add_f32 v%d, v%d, v%d" % (v, v, vT0))
        a.e("v_mov_b32 v%d, v%d" % (vT0, v))
        a.e("s_nop 1")
        a.e("v_permlane32_swap_b32 v%d, v%d" % (v, vT0))
        a.e("s_nop 1")
        a.e("v_add_f32 v%d, v%d, v%d" % (v, v, vT0))

    a.e("v_add_f32 v%d, v%d, v%d" % (vSum, XU, XU + 1))
    for i in range(2, 8):
        a.e("v_add_f32 v%d, v%d, v%d" % (vSum, vSum, XU + i))
    reduce(vSum)
    a.e("v_mul_f32 v%d, %s, v%d" % (vMean, f32(1.0 / D), vSum))
    a.e("v_mov_b32 v%d, 0" % vSum)
    for i in range(8):
        a.e("v_sub_f32 v%d, v%d, v%d" % (vT1, XU + i, vMean))
        a.e("v_fmac_f32 v%d, v%d, v%d" % (vSum, vT1, vT1))
    reduce(vSum)
    a.e("v_mul_f32 v%d, %s, v%d" % (vSum, f32(1.0 / D), vSum))
    round_bf16_pair(a, vMean, vSum, vMean, vSum, vT0)
    a.e("v_add_f32 v%d, %s, v%d" % (vSum, f32(1e-5), vSum))
    round_bf16_pair(a, vSum, vT1, vSum, vSum, vT0)
    a.e("v_sqrt_f32 v%d, v%d" % (vSum, vSum))
    a.e("s_nop 0")
    round_bf16_pair(a, vSum, vT1, vSum, vSum, vT0)
    a.e("v_rcp_f32 v%d, v%d" % (vR, vSum))
    for i in range(4):
        a.e("v_sub_f32 v%d, v%d, v%d" % (XU + 2 * i, XU + 2 * i, vMean))
        a.e("v_sub_f32 v%d, v%d, v%d" % (XU + 2 * i + 1, XU + 2 * i + 1, vMean))
        round_bf16_pair(a, XU + 2 * i, XU + 2 * i + 1, XU + 2 * i, XU + 2 * i + 1, vT0)
        a.e("v_mul_f32 v%d, v%d, v%d" % (XU + 2 * i, XU + 2 * i, vR))
        a.e("v_mul_f32 v%d, v%d, v%d" % (XU + 2 * i + 1, XU + 2 * i + 1, vR))
        a.e("v_cvt_pk_bf16_f32 v%d, v%d, v%d" % (XP + i, XU + 2 * i, XU + 2 * i + 1))
    a.e("buffer_store_dwordx4 %s, v%d, s[%d:%d], 0 offen" % (vr(XP, 4), vSt, rXN, rXN + 3))
    a.label("L_ln_end")
    a.e("s_endpgm")
    return name, (NWG, 256, 0), 32


def load_xn_frags(a, X, vL16, rXN, sBase, sTmp):
    for g in range(8):
        a.e("s_add_u32 s%d, s%d, %d" % (sTmp, sBase, g * 4096))
        for i in range(4):
            ks = 4 * g + i
            a.e("buffer_load_dwordx4 %s, v%d, s[%d:%d], s%d offen offset:%d" % (vr(X + 4 * ks, 4), vL16, rXN, rXN + 3, sTmp, i * 1024))


def gen_ffn1(a):
    name = "ffn1_kernel"
    kernel_header(a, name)
    NWG = 8 * 28
    sX, sWG, sWU, sWS = 4, 6, 8, 10
    rX, rWG, rWU, rXN, rH = 12, 16, 20, 24, 28
    sRB, sCB, sW, sT0, sT1, sT2 = 32, 33, 34, 35, 36, 37
    sK1, sK2, sXB, sHB = 38, 39, 40, 41
    a.e("s_cmp_ge_u32 s2, %d" % NWG)
    a.e("s_cbranch_scc1 L_ffn1_end")
    a.e("s_load_dwordx2 s[%d:%d], s[0:1], 0" % (sX, sX + 1))
    a.e("s_load_dwordx2 s[%d:%d], s[0:1], 48" % (sWG, sWG + 1))
    a.e("s_load_dwordx2 s[%d:%d], s[0:1], 56" % (sWU, sWU + 1))
    a.e("s_load_dwordx2 s[%d:%d], s[0:1], 88" % (sWS, sWS + 1))
    X = 0
    ACC = 128
    FR = 192
    vLane, vT0, vT1, vT2, vT3, vT4 = 232, 233, 234, 235, 236, 237
    vA = 238
    vXo, vDW, vSum, vSq, vMean, vRinv = 242, 243, 244, 245, 246, 247
    vHo = 248
    a.e("v_and_b32 v%d, 63, v0" % vLane)
    a.e("v_lshrrev_b32 v%d, 6, v0" % vT0)
    a.e("s_and_b32 s%d, s2, 7" % sRB)
    a.e("s_lshr_b32 s%d, s2, 3" % sCB)
    a.e("v_readfirstlane_b32 s%d, v%d" % (sW, vT0))
    a.e("s_waitcnt lgkmcnt(0)")
    make_srd(a, rX, sX, sX + 1, S * D * 2)
    make_srd(a, rWG, sWG, sWG + 1, D * DF * 2)
    make_srd(a, rWU, sWU, sWU + 1, D * DF * 2)
    make_srd(a, rXN, sWS, sWS + 1, XN_BYTES, WS_XN) if WS_XN else make_srd(a, rXN, sWS, sWS + 1, XN_BYTES)
    make_srd(a, rH, sWS, sWS + 1, H_BYTES, WS_H)
    a.e("v_lshrrev_b32 v%d, 3, v%d" % (vT0, vLane))
    a.e("s_movk_i32 s%d, 3584" % sT0)
    a.e("v_mul_lo_u32 v%d, v%d, s%d" % (vT0, vT0, sT0))
    a.e("v_lshrrev_b32 v%d, 2, v%d" % (vT1, vLane))
    a.e("v_and_b32 v%d, 4, v%d" % (vT1, vT1))
    a.e("v_and_b32 v%d, 7, v%d" % (vT2, vLane))
    a.e("v_xor_b32 v%d, v%d, v%d" % (vT1, vT1, vT2))
    a.e("v_lshl_add_u32 v%d, v%d, 4, v%d" % (vDW, vT1, vT0))
    a.e("v_lshlrev_b32 v%d, 4, v%d" % (vXo, vLane))
    a.e("s_lshl_b32 s%d, s%d, 3" % (sK2, sRB))
    a.e("s_add_u32 s%d, s%d, s%d" % (sK2, sK2, sW))
    a.e("s_lshl_b32 s%d, s%d, 15" % (sXB, sK2))
    a.e("s_mul_i32 s%d, s%d, %d" % (sT0, sW, 16 * 3584))
    a.e("s_lshl_b32 s%d, s%d, 7" % (sT1, sCB))
    a.e("s_add_u32 s%d, s%d, s%d" % (sT0, sT0, sT1))
    a.e("s_lshl_b32 s%d, s%d, 11" % (sT1, sW))
    for q in range(4):
        for i in range(2):
            a.e("s_add_u32 s%d, s%d, %d" % (sT2, sT0, (128 * q + 8 * i) * 3584))
            a.e("s_add_u32 m0, s%d, %d" % (sT1, q * 16384 + i * 1024))
            a.e("s_nop 0")
            a.e("buffer_load_dwordx4 v%d, s[%d:%d], s%d offen lds" % (vDW, rWG, rWG + 3, sT2))
            a.e("s_add_u32 m0, s%d, %d" % (sT1, 65536 + q * 16384 + i * 1024))
            a.e("s_nop 0")
            a.e("buffer_load_dwordx4 v%d, s[%d:%d], s%d offen lds" % (vDW, rWU, rWU + 3, sT2))
        for g in range(2):
            a.e("s_add_u32 s%d, s%d, %d" % (sT2, sXB, (2 * q + g) * 4096))
            for i in range(4):
                ks = 8 * q + 4 * g + i
                a.e("buffer_load_dwordx4 %s, v%d, s[%d:%d], s%d offen offset:%d" % (vr(X + 4 * ks, 4), vXo, rXN, rXN + 3, sT2, i * 1024))
    a.e("s_mul_i32 s%d, s%d, %d" % (sHB, sK2, 112 * 1024))
    a.e("s_lshl_b32 s%d, s%d, 12" % (sT2, sCB))
    a.e("s_add_u32 s%d, s%d, s%d" % (sHB, sHB, sT2))
    tr_lane_off(a, vT2, vLane, vT0, vT1)
    a.e("v_lshrrev_b32 v%d, 5, v%d" % (vT0, vLane))
    a.e("v_lshlrev_b32 v%d, 3, v%d" % (vT0, vT0))
    a.e("v_bfe_u32 v%d, v%d, 2, 2" % (vT1, vLane))
    a.e("v_add_u32 v%d, v%d, v%d" % (vT0, vT0, vT1))
    a.e("v_lshl_add_u32 v%d, v%d, 7, v%d" % (vT2, vT0, vT2))
    a.e("v_lshrrev_b32 v%d, 1, v%d" % (vT1, vT1))
    a.e("v_lshlrev_b32 v%d, 6, v%d" % (vT1, vT1))
    a.e("v_add_u32 v%d, v%d, v%d" % (vA + 0, vT2, vT1))
    a.e("v_xor_b32 v%d, 64, v%d" % (vT1, vT1))
    a.e("v_add_u32 v%d, v%d, v%d" % (vA + 1, vT2, vT1))
    a.e("v_add_u32 v%d, 0x10000, v%d" % (vA + 2, vA + 0))
    a.e("v_add_u32 v%d, 0x10000, v%d" % (vA + 3, vA + 1))
    NFR = 10
    PD = 6

    def frag(n):
        return FR + 4 * (n % NFR)

    for qt in range(4):
        a.e("s_waitcnt vmcnt(%d)" % (12 * (3 - qt)))
        a.e("s_barrier")
        seq = [(ks, q) for ks in range(8 * qt, 8 * qt + 8) for q in range(4)]

        def issue(n):
            ks, q = seq[n]
            for t in range(2):
                a.lds("ds_read_b64_tr_b16 %s, v%d offset:%d" % (vr(frag(n) + 2 * t, 2), vA + q, (16 * ks + 4 * t) * 128), n)

        for n in range(PD):
            issue(n)
        for n in range(len(seq)):
            if n + PD < len(seq):
                issue(n + PD)
            ks, q = seq[n]
            a.wait_lds(n)
            acc = ACC + 16 * q
            a.e("v_mfma_f32_32x32x16_bf16 %s, %s, %s, %s" % (vr(acc, 16), vr(frag(n), 4), vr(X + 4 * ks, 4), "0" if ks == 0 else vr(acc, 16)))
    a.e("s_nop 15")
    a.e("s_nop 3")
    KK = -2.0 * math.sqrt(2.0 / math.pi) * math.log2(math.e)
    a.e("s_mov_b32 s%d, %s" % (sK1, f32(KK * 0.044715)))
    a.e("v_mov_b32 v%d, %s" % (vT4, f32(KK)))
    for cs in range(2):
        G = ACC + 16 * cs
        U = ACC + 32 + 16 * cs
        for p in range(8):
            g0, g1, u0, u1 = G + 2 * p, G + 2 * p + 1, U + 2 * p, U + 2 * p + 1
            round_bf16_pair(a, g0, g1, g0, g1, vT0)
            round_bf16_pair(a, u0, u1, u0, u1, vT0)
            for g, t in ((g0, vT0), (g1, vT1)):
                a.e("v_mul_f32 v%d, v%d, v%d" % (t, g, g))
                a.e("v_fma_f32 v%d, v%d, s%d, v%d" % (t, t, sK1, vT4))
                a.e("v_mul_f32 v%d, v%d, v%d" % (t, t, g))
            a.e("v_exp_f32 v%d, v%d" % (vT0, vT0))
            a.e("v_exp_f32 v%d, v%d" % (vT1, vT1))
            a.e("s_nop 0")
            a.e("v_add_f32 v%d, 1.0, v%d" % (vT0, vT0))
            a.e("v_add_f32 v%d, 1.0, v%d" % (vT1, vT1))
            a.e("v_rcp_f32 v%d, v%d" % (vT0, vT0))
            a.e("v_rcp_f32 v%d, v%d" % (vT1, vT1))
            a.e("s_nop 0")
            a.e("v_mul_f32 v%d, v%d, v%d" % (g0, g0, vT0))
            a.e("v_mul_f32 v%d, v%d, v%d" % (g1, g1, vT1))
            round_bf16_pair(a, g0, g1, g0, g1, vT0)
            a.e("v_mul_f32 v%d, v%d, v%d" % (g0, g0, u0))
            a.e("v_mul_f32 v%d, v%d, v%d" % (g1, g1, u1))
            a.e("v_cvt_pk_bf16_f32 v%d, v%d, v%d" % (G + p, g0, g1))
        a.e("buffer_store_dwordx4 %s, v%d, s[%d:%d], s%d offen offset:%d" % (vr(G, 4), vXo, rH, rH + 3, sHB, cs * 2048))
        a.e("buffer_store_dwordx4 %s, v%d, s[%d:%d], s%d offen offset:%d" % (vr(G + 4, 4), vXo, rH, rH + 3, sHB, cs * 2048 + 1024))
    a.label("L_ffn1_end")
    a.e("s_endpgm")
    return name, (NWG, 512, 131072), 256


def gen_attn(a):
    name = "attn_kernel"
    kernel_header(a, name)
    NWG = 256
    sK, sV, sWQ, sWS = 4, 6, 8, 10
    rK, rV, rWQ, rXN, rO = 12, 16, 20, 24, 28
    sHead, sQB, sW, sT0, sT1, sT2 = 32, 33, 34, 35, 36, 37
    sC, sJ, sKoff, sVoff, sM0K, sM0V = 38, 39, 40, 41, 42, 43
    sRBk, sXB, sOB, sT3 = 44, 45, 46, 47
    sGB, sGL, sWB, sHB = 84, 85, 86, 87
    a.e("s_cmp_ge_u32 s2, %d" % NWG)
    a.e("s_cbranch_scc1 L_attn_end")
    a.e("s_load_dwordx2 s[%d:%d], s[0:1], 8" % (sK, sK + 1))
    a.e("s_load_dwordx2 s[%d:%d], s[0:1], 16" % (sV, sV + 1))
    a.e("s_load_dwordx2 s[%d:%d], s[0:1], 24" % (sWQ, sWQ + 1))
    a.e("s_load_dwordx2 s[%d:%d], s[0:1], 88" % (sWS, sWS + 1))
    rWG, rWU, rH = 48, 52, 56
    a.e("s_load_dwordx4 s[%d:%d], s[0:1], 48" % (rWG, rWG + 3))
    rPW, rPF = 92, 96
    a.e("s_load_dwordx2 s[%d:%d], s[0:1], 32" % (rPW, rPW + 1))
    a.e("s_load_dwordx2 s[%d:%d], s[0:1], 64" % (rPW + 2, rPW + 3))
    O = 0
    SB = [64, 96]
    Q = 128
    FR = 160
    NFR = P('A_NFR', 8)
    X = 0
    QACC = 160
    PFR = 192
    vKa = 224
    vVa = 232
    vDK0, vDK1, vDV = 236, 237, 238
    vM, vM8, vL0, vL1 = 239, 240, 241, 242
    vT0, vT1, vT2, vT3, vT4 = 243, 244, 245, 246, 247
    vLane, vOo = 248, 249
    vWa = 250
    vDW = 254
    LDS_K = 98304
    LDS_V = 0
    a.e("v_and_b32 v%d, 63, v0" % vLane)
    a.e("v_lshrrev_b32 v%d, 6, v0" % vT0)
    a.e("s_lshr_b32 s%d, s2, 6" % sHead)
    a.e("s_lshl_b32 s%d, s%d, 3" % (sHead, sHead))
    a.e("s_and_b32 s%d, s2, 7" % sT0)
    a.e("s_or_b32 s%d, s%d, s%d" % (sHead, sHead, sT0))
    a.e("s_bfe_u32 s%d, s2, 0x30003" % sQB)
    a.e("v_readfirstlane_b32 s%d, v%d" % (sW, vT0))
    a.e("s_waitcnt lgkmcnt(0)")
    a.e("s_lshl_b32 s%d, s%d, 19" % (sT0, sHead))
    make_srd_s(a, rK, sK, sK + 1, S * DH * 2, sT0)
    make_srd_s(a, rV, sV, sV + 1, S * DH * 2, sT0)
    make_srd(a, rWQ, sWQ, sWQ + 1, D * H * DH * 2)
    make_srd(a, rXN, sWS, sWS + 1, XN_BYTES)
    make_srd(a, rO, sWS, sWS + 1, O_BYTES, WS_O)
    make_srd(a, rWU, rWG + 2, rWG + 3, D * DF * 2)
    make_srd(a, rWG, rWG, rWG + 1, D * DF * 2)
    make_srd(a, rH, sWS, sWS + 1, H_BYTES, WS_H)
    a.e("s_cmp_lt_u32 s%d, 28" % sHead)
    a.e("s_cselect_b32 s%d, s%d, 0" % (rH + 2, rH + 2))
    STAMP = P('A_STAMP', 0)
    stamp_n = [0]
    def stamp():
        if not STAMP:
            return
        a.e("s_memtime s[%d:%d]" % (60 + 2 * stamp_n[0], 61 + 2 * stamp_n[0]))
        stamp_n[0] += 1
    stamp()
    a.e("v_lshrrev_b32 v%d, 4, v%d" % (vT0, vLane))
    a.e("v_and_b32 v%d, 15, v%d" % (vT1, vLane))
    a.e("v_lshlrev_b32 v%d, 2, v%d" % (vT2, vT0))
    a.e("v_xor_b32 v%d, v%d, v%d" % (vT2, vT2, vT1))
    a.e("v_lshlrev_b32 v%d, 4, v%d" % (vT2, vT2))
    a.e("v_lshl_add_u32 v%d, v%d, 8, v%d" % (vDV, vT0, vT2))
    a.e("v_lshl_add_u32 v%d, v%d, 13, v%d" % (vDW, vT0, vT2))
    a.e("s_and_b32 s%d, s%d, 1" % (sT0, sW))
    a.e("s_lshl_b32 s%d, s%d, 3" % (sT0, sT0))
    a.e("v_add_u32 v%d, s%d, v%d" % (vT2, sT0, vT0))
    a.e("v_xor_b32 v%d, v%d, v%d" % (vT3, vT2, vT1))
    a.e("v_lshlrev_b32 v%d, 4, v%d" % (vT3, vT3))
    a.e("v_lshl_add_u32 v%d, v%d, 8, v%d" % (vDK0, vT0, vT3))
    a.e("v_add_u32 v%d, 4, v%d" % (vT2, vT2))
    a.e("v_xor_b32 v%d, v%d, v%d" % (vT3, vT2, vT1))
    a.e("v_lshlrev_b32 v%d, 4, v%d" % (vT3, vT3))
    a.e("v_lshl_add_u32 v%d, v%d, 8, v%d" % (vDK1, vT0, vT3))
    a.e("s_lshl_b32 s%d, s%d, 11" % (sT1, sW))
    a.e("s_add_u32 s%d, s%d, %d" % (sM0K, sT1, LDS_K))
    a.e("s_add_u32 s%d, s%d, %d" % (sM0V, sT1, LDS_V))

    def dma_k(slot, soff):
        a.e("s_add_u32 m0, s%d, %d" % (sM0K, slot * 16384))
        a.e("s_nop 0")
        a.e("buffer_load_dwordx4 v%d, s[%d:%d], s%d offen lds" % (vDK0, rK, rK + 3, soff))
        a.e("buffer_load_dwordx4 v%d, s[%d:%d], s%d offen offset:1024 lds" % (vDK1, rK, rK + 3, soff))

    def dma_v(slot, soff):
        a.e("s_add_u32 m0, s%d, %d" % (sM0V, slot * 16384))
        a.e("s_nop 0")
        a.e("buffer_load_dwordx4 v%d, s[%d:%d], s%d offen lds" % (vDV, rV, rV + 3, soff))
        a.e("buffer_load_dwordx4 v%d, s[%d:%d], s%d offen offset:1024 lds" % (vDV, rV, rV + 3, soff))

    vDG = 239
    vFa = 224
    a.e("v_lshrrev_b32 v%d, 3, v%d" % (vT0, vLane))
    a.e("s_movk_i32 s%d, 3584" % sT0)
    a.e("v_mul_lo_u32 v%d, v%d, s%d" % (vT0, vT0, sT0))
    a.e("v_lshrrev_b32 v%d, 2, v%d" % (vT2, vLane))
    a.e("v_and_b32 v%d, 4, v%d" % (vT2, vT2))
    a.e("v_and_b32 v%d, 7, v%d" % (vT3, vLane))
    a.e("v_xor_b32 v%d, v%d, v%d" % (vT2, vT2, vT3))
    a.e("v_lshl_add_u32 v%d, v%d, 4, v%d" % (vDG, vT2, vT0))
    a.e("s_lshl_b32 s%d, s%d, 3" % (sRBk, sQB))
    a.e("s_add_u32 s%d, s%d, s%d" % (sRBk, sRBk, sW))
    a.e("s_lshl_b32 s%d, s%d, 15" % (sXB, sRBk))
    a.e("v_lshlrev_b32 v%d, 4, v%d" % (vOo, vLane))
    a.e("s_mul_i32 s%d, s%d, %d" % (sGB, sW, 16 * 3584))
    a.e("s_lshl_b32 s%d, s%d, 7" % (sT2, sHead))
    a.e("s_add_u32 s%d, s%d, s%d" % (sGB, sGB, sT2))
    a.e("s_lshl_b32 s%d, s%d, 11" % (sGL, sW))
    a.e("s_lshl_b32 s%d, s%d, 17" % (sWB, sW))
    a.e("s_lshl_b32 s%d, s%d, 8" % (sT2, sHead))
    a.e("s_add_u32 s%d, s%d, s%d" % (sWB, sWB, sT2))
    a.e("s_lshl_b32 s%d, s%d, 12" % (sT3, sW))

    def gu_pieces(q):
        ps = []
        for i in range(2):
            for mat, rr in ((0, rWG), (1, rWU)):
                ps.append(["s_add_u32 s%d, s%d, %d" % (sT2, sGB, (128 * q + 8 * i) * 3584),
                           "s_add_u32 m0, s%d, %d" % (sGL, q * 32768 + mat * 16384 + i * 1024),
                           "s_nop 0",
                           "buffer_load_dwordx4 v%d, s[%d:%d], s%d offen lds" % (vDG, rr, rr + 3, sT2)])
        return [(p, ("gu", q)) for p in ps]

    def wq_pieces(q):
        ps = []
        for i in range(4):
            ps.append(["s_add_u32 s%d, s%d, %d" % (sT2, sWB, (128 * q + 4 * i) * 8192),
                       "s_add_u32 m0, s%d, %d" % (sT3, q * 32768 + i * 1024),
                       "s_nop 0",
                       "buffer_load_dwordx4 v%d, s[%d:%d], s%d offen lds" % (vDW, rWQ, rWQ + 3, sT2)])
        return [(p, ("wq", q)) for p in ps]

    def x_pieces(q):
        ps = []
        for ks in range(8 * q, 8 * q + 8):
            ps.append(["s_add_u32 s%d, s%d, %d" % (sT2, sXB, (ks >> 2) * 4096),
                       "buffer_load_dwordx4 %s, v%d, s[%d:%d], s%d offen offset:%d" % (vr(X + 4 * ks, 4), vOo, rXN, rXN + 3, sT2, (ks & 3) * 1024)])
        return [(p, ("x", q)) for p in ps]

    def kv_pieces(is_k, slot, tile):
        m0b = sM0K if is_k else sM0V
        rr = rK if is_k else rV
        v0, v1 = (vDK0, vDK1) if is_k else (vDV, vDV)
        return [(["s_add_u32 s%d, s%d, %d" % (sT2, sT1, tile * 16384), "s_add_u32 m0, s%d, %d" % (m0b, slot * 16384), "s_nop 0",
                  "buffer_load_dwordx4 v%d, s[%d:%d], s%d offen lds" % (v0, rr, rr + 3, sT2)], ("kv",)),
                (["buffer_load_dwordx4 v%d, s[%d:%d], s%d offen offset:1024 lds" % (v1, rr, rr + 3, sT2)], ("kv",))]

    def emit_piece(pc):
        ins, tag = pc
        for t in ins[:-1]:
            a.e(t)
        a.vm(ins[-1], tag)

    sU, sKS = sT0, sJ
    a.e("s_lshl_b32 s%d, s2, 3" % sU)
    a.e("s_add_u32 s%d, s%d, s%d" % (sU, sU, sW))
    a.e("s_lshr_b32 s%d, s%d, 2" % (sKS, sU))
    make_srd(a, rPF, sWS, sWS + 1, W_BYTES, WS_W)
    a.e("s_cmp_lt_u32 s%d, 1472" % sU)
    a.e("s_cselect_b32 s%d, s%d, 0" % (rPF + 2, rPF + 2))
    a.e("s_cselect_b32 s%d, 0x%x, 0" % (sT2, DF * D * 2))
    a.e("s_cmp_lt_u32 s%d, 256" % sKS)
    a.e("s_cselect_b32 s%d, s%d, s%d" % (rPW, rPW, rPW + 2))
    a.e("s_cselect_b32 s%d, s%d, s%d" % (rPW + 1, rPW + 1, rPW + 3))
    a.e("s_cselect_b32 s%d, 0x%x, s%d" % (rPW + 2, H * DH * D * 2, sT2))
    a.e("s_cselect_b32 s%d, 0, 256" % sT2)
    a.e("s_and_b32 s%d, s%d, 0xffff" % (rPW + 1, rPW + 1))
    a.e("s_mov_b32 s%d, 0x00020000" % (rPW + 3))
    a.e("s_sub_u32 s%d, s%d, s%d" % (sT2, sKS, sT2))
    a.e("s_lshl_b32 s%d, s%d, 14" % (sT2, sT2))
    a.e("s_and_b32 s%d, s%d, 3" % (sU, sU))
    a.e("s_lshl_b32 s%d, s%d, 8" % (sC, sU))
    a.e("s_add_u32 s%d, s%d, s%d" % (sT2, sT2, sC))
    WL, WR, pO, pO2, pD = 160, 176, 192, 193, 194
    a.e("v_lshrrev_b32 v%d, 4, v%d" % (vT0, vLane))
    a.e("v_and_b32 v%d, 7, v%d" % (vT1, vLane))
    a.e("v_lshlrev_b32 v%d, 6, v%d" % (pO, vT0))
    a.e("v_lshl_add_u32 v%d, v%d, 3, v%d" % (pO, vT1, pO))
    a.e("v_bfe_u32 v%d, v%d, 3, 1" % (vT2, vLane))
    a.e("v_lshl_add_u32 v%d, v%d, 13, v%d" % (pO, vT2, pO))
    a.e("v_add_u32 v%d, 0x1000, v%d" % (pO2, pO))
    for j in range(8):
        a.vm("buffer_load_dwordx2 %s, v%d, s[%d:%d], s%d offen offset:%d" % (vr(WL + 2 * j, 2), pO if j < 4 else pO2, rPW, rPW + 3, sT2, (j & 3) * 1024), ("wp",))
    a.e("s_mov_b32 s%d, %d" % (sC, 368 * 1024))
    a.e("v_mul_lo_u32 v%d, v%d, s%d" % (pD, vT0, sC))
    a.e("v_and_b32 v%d, 4, v%d" % (vT3, vT1))
    a.e("v_and_b32 v%d, 1, v%d" % (vT4, vT1))
    a.e("v_lshl_add_u32 v%d, v%d, 1, v%d" % (vT3, vT4, vT3))
    a.e("v_bfe_u32 v%d, v%d, 1, 1" % (vT4, vT1))
    a.e("v_add_u32 v%d, v%d, v%d" % (vT3, vT3, vT4))
    a.e("v_lshl_add_u32 v%d, v%d, 6, v%d" % (pD, vT3, pD))
    a.e("v_lshl_add_u32 v%d, v%d, 9, v%d" % (pD, vT2, pD))
    a.e("s_mul_i32 s%d, s%d, %d" % (sU, sU, 4 * 368 * 1024))
    a.e("s_lshl_b32 s%d, s%d, 10" % (sKS, sKS))
    a.e("s_add_u32 s%d, s%d, s%d" % (sKS, sKS, sU))
    for q in range(2):
        for pc in gu_pieces(q) + x_pieces(q):
            emit_piece(pc)
    a.e("s_mov_b32 s%d, 0x05040100" % sU)
    a.e("s_mov_b32 s%d, 0x07060302" % sC)
    a.wait_vm(("wp",))
    for b in range(4):
        for r in range(4):
            lo, hi = WL + 2 * (2 * r) + (b >> 1), WL + 2 * (2 * r + 1) + (b >> 1)
            a.e("v_perm_b32 v%d, v%d, v%d, s%d" % (WR + 4 * b + r, hi, lo, sU if (b & 1) == 0 else sC))
    for b in range(4):
        a.vm("buffer_store_dwordx4 %s, v%d, s[%d:%d], s%d offen offset:%d" % (vr(WR + 4 * b, 4), pD, rPF, rPF + 3, sKS, 16 * b), ("wps",))
    a.e("s_add_u32 s%d, s%d, %d" % (sKoff, sT1, 2 * 16384))
    a.e("s_add_u32 s%d, s%d, %d" % (sVoff, sT1, 2 * 16384))
    a.e("s_lshl_b32 s%d, s%d, 18" % (sOB, sRBk))
    a.e("s_lshl_b32 s%d, s%d, 13" % (sT2, sHead))
    a.e("s_add_u32 s%d, s%d, s%d" % (sOB, sOB, sT2))
    a.e("s_mul_i32 s%d, s%d, %d" % (sHB, sRBk, 112 * 1024))
    a.e("s_lshl_b32 s%d, s%d, 12" % (sT2, sHead))
    a.e("s_add_u32 s%d, s%d, s%d" % (sHB, sHB, sT2))
    tr_lane_off(a, vT2, vLane, vT0, vT1)
    a.e("v_bfe_u32 v%d, v%d, 2, 2" % (vT1, vLane))
    a.e("v_lshrrev_b32 v%d, 5, v%d" % (vT0, vLane))
    a.e("v_lshl_add_u32 v%d, v%d, 3, v%d" % (vT3, vT0, vT1))
    a.e("v_lshl_add_u32 v%d, v%d, 7, v%d" % (vT4, vT3, vT2))
    a.e("v_lshrrev_b32 v%d, 1, v%d" % (vFa + 3, vT1))
    a.e("v_lshlrev_b32 v%d, 6, v%d" % (vFa + 3, vFa + 3))
    a.e("v_add_u32 v%d, v%d, v%d" % (vFa + 0, vT4, vFa + 3))
    a.e("v_xor_b32 v%d, 64, v%d" % (vFa + 3, vFa + 3))
    a.e("v_add_u32 v%d, v%d, v%d" % (vFa + 1, vT4, vFa + 3))
    a.e("v_add_u32 v%d, 0x4000, v%d" % (vFa + 2, vFa + 0))
    a.e("v_add_u32 v%d, 0x4000, v%d" % (vFa + 3, vFa + 1))
    a.e("v_lshl_add_u32 v%d, v%d, 8, v%d" % (vT3, vT3, vT2))
    a.e("v_lshl_add_u32 v%d, v%d, 2, v%d" % (vT4, vT0, vT1))
    a.e("v_lshl_add_u32 v%d, v%d, 8, v%d" % (vT4, vT4, vT2))
    for db in range(4):
        a.e("v_xor_b32 v%d, %d, v%d" % (vT2, db, vT1))
        a.e("v_lshlrev_b32 v%d, 6, v%d" % (vT2, vT2))
        a.e("v_add_u32 v%d, v%d, v%d" % (vWa + db, vT3, vT2))
        a.e("v_add_u32 v%d, v%d, v%d" % (vVa + db, vT4, vT2))
    a.e("s_mov_b32 s%d, %s" % (sC, f32(math.log2(math.e) / math.sqrt(DH))))
    stamp()
    ACC4 = 160
    PFR = 128
    NP = 8
    PDQ = 5
    pctr = [0]

    def gemm_quarter(qt, addr, rowbytes, pieces=()):
        seq = [(ks, b) for ks in range(8 * qt, 8 * qt + 8) for b in range(4)]
        base = pctr[0]

        def pfrag(n):
            return PFR + 4 * ((base + n) % NP)

        def pissue(n):
            ks, b = seq[n]
            for t in range(2):
                off = (qt * 32768 + (16 * (ks - 8 * qt) + 4 * t) * rowbytes) & 0xffff
                a.lds("ds_read_b64_tr_b16 %s, v%d offset:%d" % (vr(pfrag(n) + 2 * t, 2), addr + b, off), ("q", base + n))

        for n in range(PDQ):
            pissue(n)
        for n in range(len(seq)):
            if n + PDQ < len(seq):
                pissue(n + PDQ)
            ks, b = seq[n]
            a.wait_lds(("q", base + n))
            acc = ACC4 + 16 * b
            a.e("v_mfma_f32_32x32x16_bf16 %s, %s, %s, %s" % (vr(acc, 16), vr(pfrag(n), 4), vr(X + 4 * ks, 4), "0" if ks == 0 else vr(acc, 16)))
            if n % 2 == 0 and n // 2 < len(pieces):
                emit_piece(pieces[n // 2])
        assert len(pieces) <= 16
        pctr[0] += len(seq)

    fp = [gu_pieces(2) + x_pieces(2), gu_pieces(3) + x_pieces(3) + wq_pieces(0), wq_pieces(1) + kv_pieces(True, 2, 0) + kv_pieces(True, 3, 1), wq_pieces(2)]
    for qt in range(4):
        a.wait_vm(("x", qt))
        a.e("s_barrier")
        if qt == 2:
            for b in range(4):
                a.e("v_add_u32 v%d, 0x10000, v%d" % (vFa + b, vFa + b))
        gemm_quarter(qt, vFa, 128, fp[qt])
    a.e("s_nop 15")
    a.e("s_nop 3")
    KK = -2.0 * math.sqrt(2.0 / math.pi) * math.log2(math.e)
    a.e("s_mov_b32 s%d, %s" % (sT2, f32(KK * 0.044715)))
    a.e("v_mov_b32 v%d, %s" % (vT4, f32(KK)))
    for cs in range(2):
        G = ACC4 + 16 * cs
        U = ACC4 + 32 + 16 * cs
        for p in range(8):
            g0, g1, u0, u1 = G + 2 * p, G + 2 * p + 1, U + 2 * p, U + 2 * p + 1
            round_bf16_pair(a, g0, g1, g0, g1, vT0)
            round_bf16_pair(a, u0, u1, u0, u1, vT0)
            for g, t in ((g0, vT0), (g1, vT1)):
                a.e("v_mul_f32 v%d, v%d, v%d" % (t, g, g))
                a.e("v_fma_f32 v%d, v%d, s%d, v%d" % (t, t, sT2, vT4))
                a.e("v_mul_f32 v%d, v%d, v%d" % (t, t, g))
            a.e("v_exp_f32 v%d, v%d" % (vT0, vT0))
            a.e("v_exp_f32 v%d, v%d" % (vT1, vT1))
            a.e("s_nop 0")
            a.e("v_add_f32 v%d, 1.0, v%d" % (vT0, vT0))
            a.e("v_add_f32 v%d, 1.0, v%d" % (vT1, vT1))
            a.e("v_rcp_f32 v%d, v%d" % (vT0, vT0))
            a.e("v_rcp_f32 v%d, v%d" % (vT1, vT1))
            a.e("s_nop 0")
            a.e("v_mul_f32 v%d, v%d, v%d" % (g0, g0, vT0))
            a.e("v_mul_f32 v%d, v%d, v%d" % (g1, g1, vT1))
            round_bf16_pair(a, g0, g1, g0, g1, vT0)
            a.e("v_mul_f32 v%d, v%d, v%d" % (g0, g0, u0))
            a.e("v_mul_f32 v%d, v%d, v%d" % (g1, g1, u1))
            a.e("v_cvt_pk_bf16_f32 v%d, v%d, v%d" % (G + p, g0, g1))
        a.vm("buffer_store_dwordx4 %s, v%d, s[%d:%d], s%d offen offset:%d" % (vr(G, 4), vOo, rH, rH + 3, sHB, cs * 2048), ("st",))
        a.vm("buffer_store_dwordx4 %s, v%d, s[%d:%d], s%d offen offset:%d" % (vr(G + 4, 4), vOo, rH, rH + 3, sHB, cs * 2048 + 1024), ("st",))
    stamp()
    qp = [wq_pieces(3), kv_pieces(False, 0, 0) + kv_pieces(False, 1, 1), [], []]
    for qt in range(4):
        a.wait_vm(("wq", qt))
        a.e("s_barrier")
        if qt == 2:
            for db in range(4):
                a.e("v_add_u32 v%d, 0x10000, v%d" % (vWa + db, vWa + db))
        gemm_quarter(qt, vWa, 256, qp[qt])
    a.e("s_nop 15")
    a.e("s_nop 3")
    for db in range(4):
        for p in range(8):
            a.e("v_mul_f32 v%d, s%d, v%d" % (ACC4 + 16 * db + 2 * p, sC, ACC4 + 16 * db + 2 * p))
            a.e("v_mul_f32 v%d, s%d, v%d" % (ACC4 + 16 * db + 2 * p + 1, sC, ACC4 + 16 * db + 2 * p + 1))
            a.e("v_cvt_pk_bf16_f32 v%d, v%d, v%d" % (Q + 8 * db + p, ACC4 + 16 * db + 2 * p, ACC4 + 16 * db + 2 * p + 1))
    a.e("v_lshrrev_b32 v%d, 5, v%d" % (vT0, vLane))
    a.e("v_and_b32 v%d, 31, v%d" % (vT1, vLane))
    a.e("v_and_b32 v%d, 15, v%d" % (vT2, vLane))
    a.e("v_xor_b32 v%d, v%d, v%d" % (vT2, vT2, vT0))
    a.e("v_lshlrev_b32 v%d, 8, v%d" % (vT1, vT1))
    a.e("v_add_u32 v%d, 0x%x, v%d" % (vT1, LDS_K, vT1))
    for ks in range(8):
        a.e("v_xor_b32 v%d, %d, v%d" % (vT3, 2 * ks, vT2))
        a.e("v_lshl_add_u32 v%d, v%d, 4, v%d" % (vKa + ks, vT3, vT1))
    a.e("s_waitcnt vmcnt(0)")
    a.e("s_barrier")
    dma_k(0, sKoff)
    a.e("s_add_u32 s%d, s%d, 16384" % (sKoff, sKoff))
    a.e("s_add_u32 m0, s%d, %d" % (sM0K, 1 * 16384))
    a.e("s_nop 0")
    a.e("buffer_load_dwordx4 v%d, s[%d:%d], s%d offen lds" % (vDK0, rK, rK + 3, sKoff))
    for i in range(64):
        a.e("v_mov_b32 v%d, 0" % (O + i))
    NEGM = 192
    for i in range(16):
        a.e("v_mov_b32 v%d, 0" % (NEGM + i))
    a.e("v_mov_b32 v%d, 0" % vL0)
    a.e("v_mov_b32 v%d, 0" % vL1)

    fr_ctr = [0]

    def kread(kslot, m):
        kb, ks = m >> 3, m & 7
        f = FR + 4 * (fr_ctr[0] % NFR)
        tag = ("f", fr_ctr[0])
        fr_ctr[0] += 1
        a.lds("ds_read_b128 %s, v%d offset:%d" % (vr(f, 4), vKa + ks, kslot * 16384 + kb * 8192), tag)
        return (f, tag)

    def vread(vslot, m):
        s_, db = m >> 2, m & 3
        f = FR + 4 * (fr_ctr[0] % NFR)
        tag = ("f", fr_ctr[0])
        fr_ctr[0] += 1
        for t in range(2):
            a.lds("ds_read_b64_tr_b16 %s, v%d offset:%d" % (vr(f + 2 * t, 2), vVa + db, vslot * 16384 + (16 * s_ + 8 * t) * 256), tag)
        return (f, tag)

    def softmax_ops(cur):
        ops = []
        for g in range(8):
            b = cur + 4 * g
            for i in range(4):
                ops.append("v_exp_f32 v%d, v%d" % (b + i, b + i))
            for i in range(4):
                l = vL0 if i % 2 == 0 else vL1
                ops.append("v_add_f32 v%d, v%d, v%d" % (l, l, b + i))
            ops.append("v_cvt_pk_bf16_f32 v%d, v%d, v%d" % (cur + 2 * g, b, b + 1))
            ops.append("v_cvt_pk_bf16_f32 v%d, v%d, v%d" % (cur + 2 * g + 1, b + 2, b + 3))
        return ops

    def max_ops(nxt):
        ops = []
        ops.append("v_max3_f32 v%d, v%d, v%d, v%d" % (vT0, nxt + 0, nxt + 1, nxt + 2))
        ops.append("v_max3_f32 v%d, v%d, v%d, v%d" % (vT1, nxt + 16, nxt + 17, nxt + 18))
        for i in range(3, 15, 2):
            ops.append("v_max3_f32 v%d, v%d, v%d, v%d" % (vT0, vT0, nxt + i, nxt + i + 1))
            ops.append("v_max3_f32 v%d, v%d, v%d, v%d" % (vT1, vT1, nxt + 16 + i, nxt + 16 + i + 1))
        ops.append("v_max3_f32 v%d, v%d, v%d, v%d" % (vT0, vT0, nxt + 15, nxt + 31))
        ops.append("v_max_f32 v%d, v%d, v%d" % (vT0, vT0, vT1))
        ops.append("v_mov_b32 v%d, v%d" % (vT1, vT0))
        ops.append("s_nop 1")
        ops.append("v_permlane32_swap_b32 v%d, v%d" % (vT0, vT1))
        ops.append("s_nop 1")
        ops.append("v_max_f32 v%d, v%d, v%d" % (vT0, vT0, vT1))
        return ops

    rescale_sites = []

    def rescale_body(buf, first):
        if not first:
            a.e("v_max_f32 v%d, 0, v%d" % (vT0, vT0))
        a.e("v_sub_f32 v%d, 0, v%d" % (vT2, vT0))
        a.e("v_exp_f32 v%d, v%d" % (vT2, vT2))
        a.e("v_sub_f32 v%d, v%d, v%d" % (NEGM, NEGM, vT0))
        for i in range(1, 16):
            a.e("v_mov_b32 v%d, v%d" % (NEGM + i, NEGM))
        for i in range(32):
            a.e("v_sub_f32 v%d, v%d, v%d" % (buf + i, buf + i, vT0))
        if not first:
            for i in range(64):
                a.e("v_mul_f32 v%d, v%d, v%d" % (O + i, O + i, vT2))
            a.e("v_mul_f32 v%d, v%d, v%d" % (vL0, vL0, vT2))
            a.e("v_mul_f32 v%d, v%d, v%d" % (vL1, vL1, vT2))
        a.e("s_nop 1")

    def rescale_check(buf):
        n = a.nlabel
        a.nlabel += 1
        a.e("v_cmp_lt_f32 vcc, %s, v%d" % (f32(float(P('A_T', 48))), vT0))
        a.e("s_cbranch_vccnz L_resc_%d" % n)
        a.label("L_resc_ret_%d" % n)
        rescale_sites.append((n, buf))

    PD = P('A_PD', 4)
    q = [kread(2, m) for m in range(PD)]
    for m in range(16):
        if m + PD < 16:
            q.append(kread(2, m + PD))
        f, tag = q[m]
        a.wait_lds(tag)
        kb, ks = m >> 3, m & 7
        acc = SB[0] + 16 * kb
        a.e("v_mfma_f32_32x32x16_bf16 %s, %s, %s, %s" % (vr(acc, 16), vr(f, 4), vr(Q + 4 * ks, 4), "0" if ks == 0 else vr(acc, 16)))
    a.e("s_nop 15")
    a.e("s_nop 3")
    for op in max_ops(SB[0]):
        a.e(op)
    rescale_body(SB[0], True)
    carry = [kread(3, m) for m in range(PD)]
    a.e("s_mov_b32 s%d, 0" % sJ)
    stamp()
    if STAMP:
        a.e("s_memrealtime s[80:81]")
    a.nolds = True
    a.label("L_attn_loop")
    UNR = 4
    for u in range(UNR):
        cur, nxt = SB[u & 1], SB[(u + 1) & 1]
        kslot = (u + 1 + 2) & 3
        kslot_n = (u + 2 + 2) & 3
        vslot = u & 3
        sm = softmax_ops(cur)
        mx = max_ops(nxt)
        fill = [[] for _ in range(32)]
        CE = P('A_CE', 16)
        cost = lambda op: CE if op.startswith('v_exp') else (2 if op.startswith('s_nop') else 4)
        NS = P('A_NS', 27)
        tot = sum(cost(o) for o in sm)
        cum = 0
        for op in sm:
            fill[min(int((cum + cost(op) / 2) * NS / tot), NS - 1)].append(op)
            cum += cost(op)
        tot = sum(cost(o) for o in mx)
        cum = 0
        for op in mx:
            fill[min(NS + int((cum + cost(op) / 2) * (32 - NS) / tot), 31)].append(op)
            cum += cost(op)
        for t in range(32):
            for op in fill[t]:
                if op.startswith('v_cvt'):
                    dreg = int(op.split()[1].strip(',')[1:]) - cur
                    assert t <= 16 + 4 * (dreg // 4) - 1, (t, op)
        frags = list(carry)
        carry = []
        dpos = {P('A_D0', 1): 1, P('A_D1', 7): 2, P('A_D2', 13): 3}
        for m in range(32):
            mm = m + PD
            if mm < 16:
                frags.append(kread(kslot, mm))
            elif mm < 32:
                frags.append(vread(vslot, mm - 16))
            else:
                carry.append(kread(kslot_n, mm - 32))
            f, tag = frags[m]
            a.wait_lds(tag)
            if m < 16:
                kb, ks = m >> 3, m & 7
                acc = nxt + 16 * kb
                a.e("v_mfma_f32_32x32x16_bf16 %s, %s, %s, %s" % (vr(acc, 16), vr(f, 4), vr(Q + 4 * ks, 4), vr(NEGM, 16) if ks == 0 else vr(acc, 16)))
            else:
                s_, db = (m - 16) >> 2, (m - 16) & 3
                acc = O + 16 * db
                a.e("v_mfma_f32_32x32x16_bf16 %s, %s, %s, %s" % (vr(acc, 16), vr(f, 4), vr(cur + 4 * s_, 4), vr(acc, 16)))
            for op in fill[m]:
                if P('X_NOVALU', 0) and not op.startswith('s_'):
                    continue
                if P('X_NOEXP', 0) and op.startswith('v_exp'):
                    continue
                a.e(op)
            if m in dpos and not P('X_NODMA', 0):
                pc = dpos[m]
                if pc == 1:
                    a.e("buffer_load_dwordx4 v%d, s[%d:%d], s%d offen offset:1024 lds" % (vDK1, rK, rK + 3, sKoff))
                    a.e("s_add_u32 s%d, s%d, 16384" % (sKoff, sKoff))
                elif pc == 2:
                    a.e("s_add_u32 m0, s%d, %d" % (sM0V, ((u + 2) & 3) * 16384))
                    a.e("s_nop 0")
                    a.e("buffer_load_dwordx4 v%d, s[%d:%d], s%d offen lds" % (vDV, rV, rV + 3, sVoff))
                else:
                    a.e("buffer_load_dwordx4 v%d, s[%d:%d], s%d offen offset:1024 lds" % (vDV, rV, rV + 3, sVoff))
                    a.e("s_add_u32 s%d, s%d, 16384" % (sVoff, sVoff))
            if m == 32 - PD - 1:
                if not P('X_NOBAR2', 0):
                    a.e("s_waitcnt vmcnt(4)")
                    a.e("s_barrier")
            if m == 32 - PD + 1 and not P('X_NODMA', 0):
                a.e("s_add_u32 m0, s%d, %d" % (sM0K, ((u + 4 + 2) & 3) * 16384))
                a.e("s_nop 0")
                a.e("buffer_load_dwordx4 v%d, s[%d:%d], s%d offen lds" % (vDK0, rK, rK + 3, sKoff))
        if u == UNR - 1:
            a.e("s_cmp_eq_u32 s%d, %d" % (sJ, 32 - UNR))
            a.e("s_cbranch_scc1 L_attn_done")
        rescale_check(nxt)
    a.e("s_add_u32 s%d, s%d, %d" % (sJ, sJ, UNR))
    a.e("s_branch L_attn_loop")
    a.label("L_attn_done")
    a.nolds = False
    stamp()
    if STAMP:
        a.e("s_memrealtime s[82:83]")
    a.wait_lds_all()
    a.e("s_nop 15")
    a.e("s_nop 3")
    a.e("v_add_f32 v%d, v%d, v%d" % (vL0, vL0, vL1))
    a.e("v_mov_b32 v%d, v%d" % (vT1, vL0))
    a.e("s_nop 1")
    a.e("v_permlane32_swap_b32 v%d, v%d" % (vL0, vT1))
    a.e("s_nop 1")
    a.e("v_add_f32 v%d, v%d, v%d" % (vL0, vL0, vT1))
    a.e("v_rcp_f32 v%d, v%d" % (vL0, vL0))
    a.e("s_nop 0")
    for db in range(4):
        for i in range(16):
            a.e("v_mul_f32 v%d, v%d, v%d" % (O + 16 * db + i, O + 16 * db + i, vL0))
        for p in range(8):
            a.e("v_cvt_pk_bf16_f32 v%d, v%d, v%d" % (O + 16 * db + p, O + 16 * db + 2 * p, O + 16 * db + 2 * p + 1))
        if db == 2:
            a.e("s_add_u32 s%d, s%d, 4096" % (sOB, sOB))
        a.e("buffer_store_dwordx4 %s, v%d, s[%d:%d], s%d offen offset:%d" % (vr(O + 16 * db, 4), vOo, rO, rO + 3, sOB, (db & 1) * 2048))
        a.e("buffer_store_dwordx4 %s, v%d, s[%d:%d], s%d offen offset:%d" % (vr(O + 16 * db + 4, 4), vOo, rO, rO + 3, sOB, (db & 1) * 2048 + 1024))
    if STAMP:
        stamp()
        a.e("s_waitcnt vmcnt(0) lgkmcnt(0)")
        stamp()
        a.e("s_waitcnt lgkmcnt(0)")
        make_srd(a, 88, sWS, sWS + 1, 1 << 20, 0x3000000)
        a.e("s_lshl_b32 s%d, s2, 3" % sT0)
        a.e("s_add_u32 s%d, s%d, s%d" % (sT0, sT0, sW))
        a.e("s_lshl_b32 s%d, s%d, 6" % (sT0, sT0))
        a.e("v_mov_b32 v%d, s%d" % (vT0, sT0))
        a.e("s_sub_u32 s%d, s82, s80" % (60 + 2 * stamp_n[0]))
        for i in range(stamp_n[0] + 1):
            a.e("v_mov_b32 v%d, s%d" % (vT1, 60 + 2 * i))
            a.e("buffer_store_dword v%d, v%d, s[88:91], 0 offen offset:%d" % (vT1, vT0, 4 * i))
            a.e("s_nop 1")
    a.e("s_branch L_attn_end")
    for n, buf in rescale_sites:
        a.label("L_resc_%d" % n)
        a.e("s_nop 15")
        a.e("s_nop 3")
        rescale_body(buf, False)
        a.e("s_branch L_resc_ret_%d" % n)
    a.label("L_attn_end")
    a.e("s_endpgm")
    return name, (NWG, 512, 163840), 256


def gen_out(a):
    name = "outp_kernel"
    kernel_header(a, name)
    NWG = 256
    sX, sWO, sWD, sOut, sWS = 4, 6, 8, 10, 12
    rX, rWO, rWD, rOut, rOW, rHW = 16, 20, 24, 28, 32, 36
    sTB, sNB, sW, sT0, sT1, sT2 = 40, 41, 42, 43, 44, 45
    sLB = 46
    sAct = [47, 48]
    sWt = [49, 50]
    a.e("s_cmp_ge_u32 s2, %d" % NWG)
    a.e("s_cbranch_scc1 L_outp_end")
    a.e("s_load_dwordx2 s[%d:%d], s[0:1], 0" % (sX, sX + 1))
    a.e("s_load_dwordx2 s[%d:%d], s[0:1], 32" % (sWO, sWO + 1))
    a.e("s_load_dwordx2 s[%d:%d], s[0:1], 64" % (sWD, sWD + 1))
    a.e("s_load_dwordx2 s[%d:%d], s[0:1], 72" % (sOut, sOut + 1))
    a.e("s_load_dwordx2 s[%d:%d], s[0:1], 88" % (sWS, sWS + 1))
    NST = P('C_NST', 3)
    ACC = [0, 64]
    FB = 128
    vb = FB + 32 * NST
    vLane, vT0, vT1, vT2, vT3, vT4 = vb, vb + 1, vb + 2, vb + 3, vb + 4, vb + 5
    vL16 = vb + 9
    vXo = vb + 10
    vR = vb + 11
    XR = vb + 12
    NV = vb + 16
    a.e("v_and_b32 v%d, 63, v0" % vLane)
    a.e("v_lshrrev_b32 v%d, 6, v0" % vT0)
    a.e("s_and_b32 s%d, s2, 31" % sTB)
    a.e("s_lshr_b32 s%d, s2, 5" % sNB)
    a.e("v_readfirstlane_b32 s%d, v%d" % (sW, vT0))
    a.e("s_waitcnt lgkmcnt(0)")
    make_srd(a, rX, sX, sX + 1, S * D * 2)
    make_srd(a, rWO, sWS, sWS + 1, W_BYTES, WS_W)
    make_srd(a, rOut, sOut, sOut + 1, S * D * 2)
    make_srd(a, rOW, sWS, sWS + 1, O_BYTES, WS_O)
    make_srd(a, rHW, sWS, sWS + 1, H_BYTES, WS_H)
    a.e("v_lshlrev_b32 v%d, 4, v%d" % (vL16, vLane))
    RBS = (256 * 1024, 112 * 1024)
    for mi in range(2):
        a.e("s_mul_i32 s%d, s%d, %d" % (sAct[mi], sTB, 2 * RBS[mi]))
        a.e("s_lshl_b32 s%d, s%d, 11" % (sT0, sW))
        a.e("s_add_u32 s%d, s%d, s%d" % (sAct[mi], sAct[mi], sT0))
    a.e("s_mul_i32 s%d, s%d, %d" % (sWt[0], sNB, 2 * 368 * 1024))
    a.e("s_lshl_b32 s%d, s%d, 11" % (sT0, sW))
    a.e("s_add_u32 s%d, s%d, s%d" % (sWt[0], sWt[0], sT0))
    chunks = [(0, c) for c in range(16)] + [(1, c) for c in range(7)]

    def issue(n):
        mi, c = chunks[n]
        st = n % NST
        rAct = (rOW, rHW)[mi]
        for nb in range(2):
            a.e("s_add_u32 s%d, s%d, %d" % (sT0, sWt[0], (mi * 256 + c * 16) * 1024 + nb * 368 * 1024))
            for ks in range(2):
                a.e("buffer_load_dwordx4 %s, v%d, s[%d:%d], s%d offen offset:%d" % (vr(FB + 32 * st + 16 + 8 * ks + 4 * nb, 4), vL16, rWO, rWO + 3, sT0, ks * 1024))
        for tb in range(2):
            a.e("s_add_u32 s%d, s%d, %d" % (sT0, sAct[mi], c * 16384 + tb * RBS[mi]))
            for ks in range(2):
                a.e("buffer_load_dwordx4 %s, v%d, s[%d:%d], s%d offen offset:%d" % (vr(FB + 32 * st + 8 * ks + 4 * tb, 4), vL16, rAct, rAct + 3, sT0, ks * 1024))

    for n in range(NST - 1):
        issue(n)
    for n in range(len(chunks)):
        if n + NST - 1 < len(chunks):
            issue(n + NST - 1)
        left = min(NST - 1, len(chunks) - 1 - n)
        a.e("s_waitcnt vmcnt(%d)" % (8 * left))
        mi, c = chunks[n]
        st = n % NST
        for ks in range(2):
            for nb in range(2):
                for tb in range(2):
                    d = ACC[mi] + 16 * (nb * 2 + tb)
                    a.e("v_mfma_f32_32x32x16_bf16 %s, %s, %s, %s" % (vr(d, 16), vr(FB + 32 * st + 16 + 8 * ks + 4 * nb, 4), vr(FB + 32 * st + 8 * ks + 4 * tb, 4), "0" if (c == 0 and ks == 0) else vr(d, 16)))
    a.e("s_nop 15")
    a.e("s_nop 3")
    a.e("s_bfe_u32 s%d, s%d, 0x10001" % (sT0, sW))
    a.e("s_lshl_b32 s%d, s%d, 5" % (sT0, sT0))
    a.e("s_lshl_b32 s%d, s%d, 6" % (sT1, sTB))
    a.e("s_add_u32 s%d, s%d, s%d" % (sT0, sT0, sT1))
    a.e("v_and_b32 v%d, 31, v%d" % (vT0, vLane))
    a.e("v_add_u32 v%d, s%d, v%d" % (vT0, sT0, vT0))
    a.e("v_lshrrev_b32 v%d, 5, v%d" % (vT1, vLane))
    a.e("v_lshlrev_b32 v%d, 4, v%d" % (vT1, vT1))
    a.e("v_lshl_add_u32 v%d, v%d, 10, v%d" % (vXo, vT0, vT1))
    a.e("s_lshr_b32 s%d, s%d, 2" % (sT0, sW))
    a.e("s_lshl_b32 s%d, s%d, 6" % (sT0, sT0))
    a.e("s_and_b32 s%d, s%d, 1" % (sT1, sW))
    a.e("s_lshl_b32 s%d, s%d, 5" % (sT1, sT1))
    a.e("s_add_u32 s%d, s%d, s%d" % (sT0, sT0, sT1))
    a.e("s_lshl_b32 s%d, s%d, 7" % (sT1, sNB))
    a.e("s_add_u32 s%d, s%d, s%d" % (sT0, sT0, sT1))
    a.e("v_add_u32 v%d, s%d, v%d" % (vXo, sT0, vXo))
    a.e("buffer_load_dwordx4 %s, v%d, s[%d:%d], 0 offen" % (vr(XR, 4), vXo, rX, rX + 3))
    a.e("s_lshl_b32 s%d, s%d, 14" % (sT0, sW))
    a.e("v_add_u32 v%d, s%d, v%d" % (vT0, sT0, vL16))
    a.e("s_lshl_b32 s%d, s%d, 11" % (sT0, sW))
    a.e("v_add_u32 v%d, s%d, v%d" % (vR, sT0, vL16))
    a.e("v_add_u32 v%d, 0x10000, v%d" % (vT4, vR))
    for part in range(2):
        a.e("s_barrier")
        for i in range(16):
            a.e("ds_write_b128 v%d, %s offset:%d" % (vT0, vr(ACC[part] + 4 * i, 4), i * 1024))
        a.e("s_waitcnt lgkmcnt(0)")
        a.e("s_barrier")
        for src in range(8):
            for i in range(2):
                a.e("ds_read_b128 %s, v%d offset:%d" % (vr(ACC[part] + 8 * src + 4 * i, 4), vR if src < 4 else vT4, (src & 3) * 16384 + i * 1024))
            if src == 6:
                a.e("s_waitcnt lgkmcnt(0)")
        a.e("s_waitcnt lgkmcnt(0)")
        B = ACC[part]
        for i in range(8):
            a.e("v_add_f32 v%d, v%d, v%d" % (B + i, B + i, B + 8 + i))
            a.e("v_add_f32 v%d, v%d, v%d" % (B + 16 + i, B + 16 + i, B + 24 + i))
            a.e("v_add_f32 v%d, v%d, v%d" % (B + 32 + i, B + 32 + i, B + 40 + i))
            a.e("v_add_f32 v%d, v%d, v%d" % (B + 48 + i, B + 48 + i, B + 56 + i))
        for i in range(8):
            a.e("v_add_f32 v%d, v%d, v%d" % (B + i, B + i, B + 16 + i))
            a.e("v_add_f32 v%d, v%d, v%d" % (B + 32 + i, B + 32 + i, B + 48 + i))
        for i in range(8):
            a.e("v_add_f32 v%d, v%d, v%d" % (B + i, B + i, B + 32 + i))
    a.e("s_waitcnt vmcnt(0)")
    a.e("s_mov_b32 s%d, %s" % (sT2, f32(-math.log2(math.e))))
    for p in range(4):
        s0, s1, f0, f1 = 2 * p, 2 * p + 1, 64 + 2 * p, 64 + 2 * p + 1
        round_bf16_pair(a, s0, s1, s0, s1, vT0)
        round_bf16_pair(a, f0, f1, f0, f1, vT0)
        a.e("v_mul_f32 v%d, s%d, v%d" % (vT0, sT2, f0))
        a.e("v_mul_f32 v%d, s%d, v%d" % (vT1, sT2, f1))
        a.e("v_exp_f32 v%d, v%d" % (vT0, vT0))
        a.e("v_exp_f32 v%d, v%d" % (vT1, vT1))
        a.e("s_nop 0")
        a.e("v_add_f32 v%d, 1.0, v%d" % (vT0, vT0))
        a.e("v_add_f32 v%d, 1.0, v%d" % (vT1, vT1))
        a.e("v_rcp_f32 v%d, v%d" % (vT0, vT0))
        a.e("v_rcp_f32 v%d, v%d" % (vT1, vT1))
        a.e("s_nop 0")
        a.e("v_mul_f32 v%d, v%d, v%d" % (f0, f0, vT0))
        a.e("v_mul_f32 v%d, v%d, v%d" % (f1, f1, vT1))
        round_bf16_pair(a, f0, f1, f0, f1, vT0)
        a.e("v_mul_f32 v%d, v%d, v%d" % (s0, s0, f0))
        a.e("v_mul_f32 v%d, v%d, v%d" % (s1, s1, f1))
        round_bf16_pair(a, s0, s1, s0, s1, vT0)
        a.e("v_lshlrev_b32 v%d, 16, v%d" % (vT0, XR + p))
        a.e("v_and_b32 v%d, 0xffff0000, v%d" % (vT1, XR + p))
        a.e("v_add_f32 v%d, v%d, v%d" % (s0, s0, vT0))
        a.e("v_add_f32 v%d, v%d, v%d" % (s1, s1, vT1))
        a.e("v_cvt_pk_bf16_f32 v%d, v%d, v%d" % (XR + p, s0, s1))
    a.e("buffer_store_dwordx4 %s, v%d, s[%d:%d], 0 offen" % (vr(XR, 4), vXo, rOut, rOut + 3))
    a.label("L_outp_end")
    a.e("s_endpgm")
    return name, (NWG, 512, 131072), NV


def main():
    a = Asm()
    ks = []
    for g in (gen_ln, gen_attn, gen_out):
        a.pend = []
        ks.append(g(a))
    head = []
    for name, (nwg, blk, lds), _ in ks:
        head.append("; @launch kernel=%s grid=(%d,1,1) block=(%d,1,1) lds=%d" % (name, nwg, blk, lds))
    head.append('.amdgcn_target "amdgcn-amd-amdhsa--gfx950"')
    head.append(".text")
    tail = ['.section .rodata,"a"']
    for name, _, vg in ks:
        tail.append(".p2align 6")
        tail.append(kernel_desc(name, vg))
    open(OUT, "w").write("\n".join(head + a.lines + tail) + "\n")


if __name__ == "__main__":
    main()
```

```python
import math, struct, sys, os
P = lambda k, d: int(os.environ.get(k, d))

OUT = os.environ.get("GEN_OUT", "recurrent_scan__mha_block_cached__glu_gated_geglu__prompt.s")

S = 2048; D = 512; H = 32; DH = 128; DF = 1792
WS_XN = 0
WS_H = 0x200000
WS_O = 0x1000000
WS_W = 0x2000000
W_BYTES = 16 * 368 * 1024
XN_BYTES = S * D * 2
H_BYTES = S * DF * 2
O_BYTES = S * H * DH * 2


def f32(x):
    return "0x%08x" % struct.unpack("<I", struct.pack("<f", x))[0]


class Asm:
    def __init__(self):
        self.lines = []
        self.pend = []
        self.nlabel = 0
        self.nolds = False
        self.vpend = []

    def e(self, s):
        self.lines.append("    " + s)

    def c(self, s):
        self.lines.append("    ; " + s)

    def label(self, name):
        self.lines.append(name + ":")

    def raw(self, s):
        self.lines.append(s)

    def lds(self, text, tag):
        if P('X_NOLDS', 0) and self.nolds:
            return
        self.e(text)
        self.pend.append(tag)
        assert len(self.pend) <= 15, "too many outstanding lgkm ops"

    def wait_lds(self, tag):
        if tag not in self.pend:
            return
        idx = len(self.pend) - 1 - self.pend[::-1].index(tag)
        n = len(self.pend) - idx - 1
        self.e("s_waitcnt lgkmcnt(%d)" % n)
        self.pend = self.pend[idx + 1:]

    def vm(self, text, tag):
        self.e(text)
        self.vpend.append(tag)

    def wait_vm(self, tag):
        if tag not in self.vpend:
            return
        idx = len(self.vpend) - 1 - self.vpend[::-1].index(tag)
        n = len(self.vpend) - idx - 1
        self.e("s_waitcnt vmcnt(%d)" % n)
        self.vpend = self.vpend[idx + 1:]

    def wait_lds_all(self):
        if self.pend:
            self.e("s_waitcnt lgkmcnt(0)")
        self.pend = []


def vr(a, n):
    return "v[%d:%d]" % (a, a + n - 1)


def sr(a, n):
    return "s[%d:%d]" % (a, a + n - 1)


def make_srd(a, d, lo, hi, nbytes, add=0):
    if add:
        a.e("s_add_u32 s%d, s%d, 0x%x" % (d, lo, add))
        a.e("s_addc_u32 s%d, s%d, 0" % (d + 1, hi))
        a.e("s_and_b32 s%d, s%d, 0xffff" % (d + 1, d + 1))
    else:
        a.e("s_mov_b32 s%d, s%d" % (d, lo))
        a.e("s_and_b32 s%d, s%d, 0xffff" % (d + 1, hi))
    a.e("s_mov_b32 s%d, 0x%x" % (d + 2, nbytes))
    a.e("s_mov_b32 s%d, 0x00020000" % (d + 3))


def make_srd_s(a, d, lo, hi, nbytes, soff):
    a.e("s_add_u32 s%d, s%d, s%d" % (d, lo, soff))
    a.e("s_addc_u32 s%d, s%d, 0" % (d + 1, hi))
    a.e("s_and_b32 s%d, s%d, 0xffff" % (d + 1, d + 1))
    a.e("s_mov_b32 s%d, 0x%x" % (d + 2, nbytes))
    a.e("s_mov_b32 s%d, 0x00020000" % (d + 3))


def kernel_header(a, name):
    a.raw(".globl %s" % name)
    a.raw(".p2align 8")
    a.raw(".type %s,@function" % name)
    a.label(name)


def kernel_desc(name, vgpr, sgpr=102):
    acc = (vgpr + 3) // 4 * 4
    return """.amdhsa_kernel %s
  .amdhsa_next_free_vgpr %d
  .amdhsa_next_free_sgpr %d
  .amdhsa_accum_offset %d
  .amdhsa_group_segment_fixed_size 0
  .amdhsa_kernarg_size 96
  .amdhsa_user_sgpr_count 2
  .amdhsa_user_sgpr_kernarg_segment_ptr 1
  .amdhsa_system_sgpr_workgroup_id_x 1
.end_amdhsa_kernel""" % (name, vgpr, sgpr, acc)


def round_bf16_pair(a, d0, d1, s0, s1, tmp):
    a.e("v_cvt_pk_bf16_f32 v%d, v%d, v%d" % (tmp, s0, s1))
    a.e("v_lshlrev_b32 v%d, 16, v%d" % (d0, tmp))
    a.e("v_and_b32 v%d, 0xffff0000, v%d" % (d1, tmp))


def tr_lane_off(a, dst, vL, t0, t1):
    a.e("v_and_b32 v%d, 16, v%d" % (dst, vL))
    a.e("v_lshlrev_b32 v%d, 1, v%d" % (dst, dst))
    a.e("v_and_b32 v%d, 1, v%d" % (t0, vL))
    a.e("v_lshlrev_b32 v%d, 4, v%d" % (t0, t0))
    a.e("v_and_b32 v%d, 2, v%d" % (t1, vL))
    a.e("v_lshlrev_b32 v%d, 2, v%d" % (t1, t1))
    a.e("v_add3_u32 v%d, v%d, v%d, v%d" % (dst, dst, t0, t1))


def gen_ln(a):
    name = "lnorm_kernel"
    kernel_header(a, name)
    NLN = 512
    NWG = NLN
    sX, sWS = 4, 6
    rX, rXN = 8, 12
    sT0, sT1, sW = 16, 17, 18
    a.e("s_cmp_ge_u32 s2, %d" % NWG)
    a.e("s_cbranch_scc1 L_ln_end")
    a.e("s_load_dwordx2 s[%d:%d], s[0:1], 0" % (sX, sX + 1))
    a.e("s_load_dwordx2 s[%d:%d], s[0:1], 88" % (sWS, sWS + 1))
    vLane, vT0, vT1, vOff, vSt, vSum, vMean, vR = 1, 2, 3, 4, 5, 6, 7, 8
    XP = 12
    XU = 16
    a.e("v_and_b32 v%d, 63, v0" % vLane)
    a.e("v_lshrrev_b32 v%d, 6, v0" % vT0)
    a.e("s_lshl_b32 s%d, s2, 2" % sT0)
    a.e("v_readfirstlane_b32 s%d, v%d" % (sW, vT0))
    a.e("s_waitcnt lgkmcnt(0)")
    make_srd(a, rX, sX, sX + 1, S * D * 2)
    make_srd(a, rXN, sWS, sWS + 1, XN_BYTES)
    a.e("s_add_u32 s%d, s%d, s%d" % (sT0, sT0, sW))
    a.e("s_lshl_b32 s%d, s%d, 10" % (sT1, sT0))
    a.e("v_lshlrev_b32 v%d, 4, v%d" % (vOff, vLane))
    a.e("buffer_load_dwordx4 %s, v%d, s[%d:%d], s%d offen" % (vr(XP, 4), vOff, rX, rX + 3, sT1))
    a.e("v_lshrrev_b32 v%d, 1, v%d" % (vT0, vLane))
    a.e("v_lshlrev_b32 v%d, 10, v%d" % (vT0, vT0))
    a.e("v_and_b32 v%d, 1, v%d" % (vT1, vLane))
    a.e("v_lshl_add_u32 v%d, v%d, 9, v%d" % (vSt, vT1, vT0))
    a.e("s_lshr_b32 s%d, s%d, 5" % (sT1, sT0))
    a.e("s_lshl_b32 s%d, s%d, 15" % (sT1, sT1))
    a.e("s_and_b32 s%d, s%d, 31" % (sT0, sT0))
    a.e("s_lshl_b32 s%d, s%d, 4" % (sT0, sT0))
    a.e("s_add_u32 s%d, s%d, s%d" % (sT1, sT1, sT0))
    a.e("v_add_u32 v%d, s%d, v%d" % (vSt, sT1, vSt))
    a.e("s_waitcnt vmcnt(0)")
    for i in range(4):
        a.e("v_lshlrev_b32 v%d, 16, v%d" % (XU + 2 * i, XP + i))
        a.e("v_and_b32 v%d, 0xffff0000, v%d" % (XU + 2 * i + 1, XP + i))

    def reduce(v):
        for msk in (1, 2, 4, 8, 16):
            a.e("ds_swizzle_b32 v%d, v%d offset:0x%x" % (vT0, v, (msk << 10) | 0x1f))
            a.e("s_waitcnt lgkmcnt(0)")
            a.e("v_add_f32 v%d, v%d, v%d" % (v, v, vT0))
        a.e("v_mov_b32 v%d, v%d" % (vT0, v))
        a.e("s_nop 1")
        a.e("v_permlane32_swap_b32 v%d, v%d" % (v, vT0))
        a.e("s_nop 1")
        a.e("v_add_f32 v%d, v%d, v%d" % (v, v, vT0))

    a.e("v_add_f32 v%d, v%d, v%d" % (vSum, XU, XU + 1))
    for i in range(2, 8):
        a.e("v_add_f32 v%d, v%d, v%d" % (vSum, vSum, XU + i))
    reduce(vSum)
    a.e("v_mul_f32 v%d, %s, v%d" % (vMean, f32(1.0 / D), vSum))
    a.e("v_mov_b32 v%d, 0" % vSum)
    for i in range(8):
        a.e("v_sub_f32 v%d, v%d, v%d" % (vT1, XU + i, vMean))
        a.e("v_fmac_f32 v%d, v%d, v%d" % (vSum, vT1, vT1))
    reduce(vSum)
    a.e("v_mul_f32 v%d, %s, v%d" % (vSum, f32(1.0 / D), vSum))
    round_bf16_pair(a, vMean, vSum, vMean, vSum, vT0)
    a.e("v_add_f32 v%d, %s, v%d" % (vSum, f32(1e-5), vSum))
    round_bf16_pair(a, vSum, vT1, vSum, vSum, vT0)
    a.e("v_sqrt_f32 v%d, v%d" % (vSum, vSum))
    a.e("s_nop 0")
    round_bf16_pair(a, vSum, vT1, vSum, vSum, vT0)
    a.e("v_rcp_f32 v%d, v%d" % (vR, vSum))
    for i in range(4):
        a.e("v_sub_f32 v%d, v%d, v%d" % (XU + 2 * i, XU + 2 * i, vMean))
        a.e("v_sub_f32 v%d, v%d, v%d" % (XU + 2 * i + 1, XU + 2 * i + 1, vMean))
        round_bf16_pair(a, XU + 2 * i, XU + 2 * i + 1, XU + 2 * i, XU + 2 * i + 1, vT0)
        a.e("v_mul_f32 v%d, v%d, v%d" % (XU + 2 * i, XU + 2 * i, vR))
        a.e("v_mul_f32 v%d, v%d, v%d" % (XU + 2 * i + 1, XU + 2 * i + 1, vR))
        a.e("v_cvt_pk_bf16_f32 v%d, v%d, v%d" % (XP + i, XU + 2 * i, XU + 2 * i + 1))
    a.e("buffer_store_dwordx4 %s, v%d, s[%d:%d], 0 offen" % (vr(XP, 4), vSt, rXN, rXN + 3))
    a.label("L_ln_end")
    a.e("s_endpgm")
    return name, (NWG, 256, 0), 32


def load_xn_frags(a, X, vL16, rXN, sBase, sTmp):
    for g in range(8):
        a.e("s_add_u32 s%d, s%d, %d" % (sTmp, sBase, g * 4096))
        for i in range(4):
            ks = 4 * g + i
            a.e("buffer_load_dwordx4 %s, v%d, s[%d:%d], s%d offen offset:%d" % (vr(X + 4 * ks, 4), vL16, rXN, rXN + 3, sTmp, i * 1024))


def gen_ffn1(a):
    name = "ffn1_kernel"
    kernel_header(a, name)
    NWG = 8 * 28
    sX, sWG, sWU, sWS = 4, 6, 8, 10
    rX, rWG, rWU, rXN, rH = 12, 16, 20, 24, 28
    sRB, sCB, sW, sT0, sT1, sT2 = 32, 33, 34, 35, 36, 37
    sK1, sK2, sXB, sHB = 38, 39, 40, 41
    a.e("s_cmp_ge_u32 s2, %d" % NWG)
    a.e("s_cbranch_scc1 L_ffn1_end")
    a.e("s_load_dwordx2 s[%d:%d], s[0:1], 0" % (sX, sX + 1))
    a.e("s_load_dwordx2 s[%d:%d], s[0:1], 48" % (sWG, sWG + 1))
    a.e("s_load_dwordx2 s[%d:%d], s[0:1], 56" % (sWU, sWU + 1))
    a.e("s_load_dwordx2 s[%d:%d], s[0:1], 88" % (sWS, sWS + 1))
    X = 0
    ACC = 128
    FR = 192
    vLane, vT0, vT1, vT2, vT3, vT4 = 232, 233, 234, 235, 236, 237
    vA = 238
    vXo, vDW, vSum, vSq, vMean, vRinv = 242, 243, 244, 245, 246, 247
    vHo = 248
    a.e("v_and_b32 v%d, 63, v0" % vLane)
    a.e("v_lshrrev_b32 v%d, 6, v0" % vT0)
    a.e("s_and_b32 s%d, s2, 7" % sRB)
    a.e("s_lshr_b32 s%d, s2, 3" % sCB)
    a.e("v_readfirstlane_b32 s%d, v%d" % (sW, vT0))
    a.e("s_waitcnt lgkmcnt(0)")
    make_srd(a, rX, sX, sX + 1, S * D * 2)
    make_srd(a, rWG, sWG, sWG + 1, D * DF * 2)
    make_srd(a, rWU, sWU, sWU + 1, D * DF * 2)
    make_srd(a, rXN, sWS, sWS + 1, XN_BYTES, WS_XN) if WS_XN else make_srd(a, rXN, sWS, sWS + 1, XN_BYTES)
    make_srd(a, rH, sWS, sWS + 1, H_BYTES, WS_H)
    a.e("v_lshrrev_b32 v%d, 3, v%d" % (vT0, vLane))
    a.e("s_movk_i32 s%d, 3584" % sT0)
    a.e("v_mul_lo_u32 v%d, v%d, s%d" % (vT0, vT0, sT0))
    a.e("v_lshrrev_b32 v%d, 2, v%d" % (vT1, vLane))
    a.e("v_and_b32 v%d, 4, v%d" % (vT1, vT1))
    a.e("v_and_b32 v%d, 7, v%d" % (vT2, vLane))
    a.e("v_xor_b32 v%d, v%d, v%d" % (vT1, vT1, vT2))
    a.e("v_lshl_add_u32 v%d, v%d, 4, v%d" % (vDW, vT1, vT0))
    a.e("v_lshlrev_b32 v%d, 4, v%d" % (vXo, vLane))
    a.e("s_lshl_b32 s%d, s%d, 3" % (sK2, sRB))
    a.e("s_add_u32 s%d, s%d, s%d" % (sK2, sK2, sW))
    a.e("s_lshl_b32 s%d, s%d, 15" % (sXB, sK2))
    a.e("s_mul_i32 s%d, s%d, %d" % (sT0, sW, 16 * 3584))
    a.e("s_lshl_b32 s%d, s%d, 7" % (sT1, sCB))
    a.e("s_add_u32 s%d, s%d, s%d" % (sT0, sT0, sT1))
    a.e("s_lshl_b32 s%d, s%d, 11" % (sT1, sW))
    for q in range(4):
        for i in range(2):
            a.e("s_add_u32 s%d, s%d, %d" % (sT2, sT0, (128 * q + 8 * i) * 3584))
            a.e("s_add_u32 m0, s%d, %d" % (sT1, q * 16384 + i * 1024))
            a.e("s_nop 0")
            a.e("buffer_load_dwordx4 v%d, s[%d:%d], s%d offen lds" % (vDW, rWG, rWG + 3, sT2))
            a.e("s_add_u32 m0, s%d, %d" % (sT1, 65536 + q * 16384 + i * 1024))
            a.e("s_nop 0")
            a.e("buffer_load_dwordx4 v%d, s[%d:%d], s%d offen lds" % (vDW, rWU, rWU + 3, sT2))
        for g in range(2):
            a.e("s_add_u32 s%d, s%d, %d" % (sT2, sXB, (2 * q + g) * 4096))
            for i in range(4):
                ks = 8 * q + 4 * g + i
                a.e("buffer_load_dwordx4 %s, v%d, s[%d:%d], s%d offen offset:%d" % (vr(X + 4 * ks, 4), vXo, rXN, rXN + 3, sT2, i * 1024))
    a.e("s_mul_i32 s%d, s%d, %d" % (sHB, sK2, 112 * 1024))
    a.e("s_lshl_b32 s%d, s%d, 12" % (sT2, sCB))
    a.e("s_add_u32 s%d, s%d, s%d" % (sHB, sHB, sT2))
    tr_lane_off(a, vT2, vLane, vT0, vT1)
    a.e("v_lshrrev_b32 v%d, 5, v%d" % (vT0, vLane))
    a.e("v_lshlrev_b32 v%d, 3, v%d" % (vT0, vT0))
    a.e("v_bfe_u32 v%d, v%d, 2, 2" % (vT1, vLane))
    a.e("v_add_u32 v%d, v%d, v%d" % (vT0, vT0, vT1))
    a.e("v_lshl_add_u32 v%d, v%d, 7, v%d" % (vT2, vT0, vT2))
    a.e("v_lshrrev_b32 v%d, 1, v%d" % (vT1, vT1))
    a.e("v_lshlrev_b32 v%d, 6, v%d" % (vT1, vT1))
    a.e("v_add_u32 v%d, v%d, v%d" % (vA + 0, vT2, vT1))
    a.e("v_xor_b32 v%d, 64, v%d" % (vT1, vT1))
    a.e("v_add_u32 v%d, v%d, v%d" % (vA + 1, vT2, vT1))
    a.e("v_add_u32 v%d, 0x10000, v%d" % (vA + 2, vA + 0))
    a.e("v_add_u32 v%d, 0x10000, v%d" % (vA + 3, vA + 1))
    NFR = 10
    PD = 6

    def frag(n):
        return FR + 4 * (n % NFR)

    for qt in range(4):
        a.e("s_waitcnt vmcnt(%d)" % (12 * (3 - qt)))
        a.e("s_barrier")
        seq = [(ks, q) for ks in range(8 * qt, 8 * qt + 8) for q in range(4)]

        def issue(n):
            ks, q = seq[n]
            for t in range(2):
                a.lds("ds_read_b64_tr_b16 %s, v%d offset:%d" % (vr(frag(n) + 2 * t, 2), vA + q, (16 * ks + 4 * t) * 128), n)

        for n in range(PD):
            issue(n)
        for n in range(len(seq)):
            if n + PD < len(seq):
                issue(n + PD)
            ks, q = seq[n]
            a.wait_lds(n)
            acc = ACC + 16 * q
            a.e("v_mfma_f32_32x32x16_bf16 %s, %s, %s, %s" % (vr(acc, 16), vr(frag(n), 4), vr(X + 4 * ks, 4), "0" if ks == 0 else vr(acc, 16)))
    a.e("s_nop 15")
    a.e("s_nop 3")
    KK = -2.0 * math.sqrt(2.0 / math.pi) * math.log2(math.e)
    a.e("s_mov_b32 s%d, %s" % (sK1, f32(KK * 0.044715)))
    a.e("v_mov_b32 v%d, %s" % (vT4, f32(KK)))
    for cs in range(2):
        G = ACC + 16 * cs
        U = ACC + 32 + 16 * cs
        for p in range(8):
            g0, g1, u0, u1 = G + 2 * p, G + 2 * p + 1, U + 2 * p, U + 2 * p + 1
            round_bf16_pair(a, g0, g1, g0, g1, vT0)
            round_bf16_pair(a, u0, u1, u0, u1, vT0)
            for g, t in ((g0, vT0), (g1, vT1)):
                a.e("v_mul_f32 v%d, v%d, v%d" % (t, g, g))
                a.e("v_fma_f32 v%d, v%d, s%d, v%d" % (t, t, sK1, vT4))
                a.e("v_mul_f32 v%d, v%d, v%d" % (t, t, g))
            a.e("v_exp_f32 v%d, v%d" % (vT0, vT0))
            a.e("v_exp_f32 v%d, v%d" % (vT1, vT1))
            a.e("s_nop 0")
            a.e("v_add_f32 v%d, 1.0, v%d" % (vT0, vT0))
            a.e("v_add_f32 v%d, 1.0, v%d" % (vT1, vT1))
            a.e("v_rcp_f32 v%d, v%d" % (vT0, vT0))
            a.e("v_rcp_f32 v%d, v%d" % (vT1, vT1))
            a.e("s_nop 0")
            a.e("v_mul_f32 v%d, v%d, v%d" % (g0, g0, vT0))
            a.e("v_mul_f32 v%d, v%d, v%d" % (g1, g1, vT1))
            round_bf16_pair(a, g0, g1, g0, g1, vT0)
            a.e("v_mul_f32 v%d, v%d, v%d" % (g0, g0, u0))
            a.e("v_mul_f32 v%d, v%d, v%d" % (g1, g1, u1))
            a.e("v_cvt_pk_bf16_f32 v%d, v%d, v%d" % (G + p, g0, g1))
        a.e("buffer_store_dwordx4 %s, v%d, s[%d:%d], s%d offen offset:%d" % (vr(G, 4), vXo, rH, rH + 3, sHB, cs * 2048))
        a.e("buffer_store_dwordx4 %s, v%d, s[%d:%d], s%d offen offset:%d" % (vr(G + 4, 4), vXo, rH, rH + 3, sHB, cs * 2048 + 1024))
    a.label("L_ffn1_end")
    a.e("s_endpgm")
    return name, (NWG, 512, 131072), 256


def gen_attn(a):
    name = "attn_kernel"
    kernel_header(a, name)
    NWG = 256
    sK, sV, sWQ, sWS = 4, 6, 8, 10
    rK, rV, rWQ, rXN, rO = 12, 16, 20, 24, 28
    sHead, sQB, sW, sT0, sT1, sT2 = 32, 33, 34, 35, 36, 37
    sC, sJ, sKoff, sVoff, sM0K, sM0V = 38, 39, 40, 41, 42, 43
    sRBk, sXB, sOB, sT3 = 44, 45, 46, 47
    sGB, sGL, sWB, sHB = 84, 85, 86, 87
    a.e("s_cmp_ge_u32 s2, %d" % NWG)
    a.e("s_cbranch_scc1 L_attn_end")
    a.e("s_load_dwordx2 s[%d:%d], s[0:1], 8" % (sK, sK + 1))
    a.e("s_load_dwordx2 s[%d:%d], s[0:1], 16" % (sV, sV + 1))
    a.e("s_load_dwordx2 s[%d:%d], s[0:1], 24" % (sWQ, sWQ + 1))
    a.e("s_load_dwordx2 s[%d:%d], s[0:1], 88" % (sWS, sWS + 1))
    rWG, rWU, rH = 48, 52, 56
    a.e("s_load_dwordx4 s[%d:%d], s[0:1], 48" % (rWG, rWG + 3))
    rPW, rPF = 92, 96
    a.e("s_load_dwordx2 s[%d:%d], s[0:1], 32" % (rPW, rPW + 1))
    a.e("s_load_dwordx2 s[%d:%d], s[0:1], 64" % (rPW + 2, rPW + 3))
    O = 0
    SB = [64, 96]
    Q = 128
    FR = 160
    NFR = P('A_NFR', 8)
    X = 0
    QACC = 160
    PFR = 192
    vKa = 224
    vVa = 232
    vDK0, vDK1, vDV = 236, 237, 238
    vM, vM8, vL0, vL1 = 239, 240, 241, 242
    vT0, vT1, vT2, vT3, vT4 = 243, 244, 245, 246, 247
    vLane, vOo = 248, 249
    vWa = 250
    vDW = 254
    LDS_K = 98304
    LDS_V = 0
    a.e("v_and_b32 v%d, 63, v0" % vLane)
    a.e("v_lshrrev_b32 v%d, 6, v0" % vT0)
    a.e("s_lshr_b32 s%d, s2, 6" % sHead)
    a.e("s_lshl_b32 s%d, s%d, 3" % (sHead, sHead))
    a.e("s_and_b32 s%d, s2, 7" % sT0)
    a.e("s_or_b32 s%d, s%d, s%d" % (sHead, sHead, sT0))
    a.e("s_bfe_u32 s%d, s2, 0x30003" % sQB)
    a.e("v_readfirstlane_b32 s%d, v%d" % (sW, vT0))
    a.e("s_waitcnt lgkmcnt(0)")
    a.e("s_lshl_b32 s%d, s%d, 19" % (sT0, sHead))
    make_srd_s(a, rK, sK, sK + 1, S * DH * 2, sT0)
    make_srd_s(a, rV, sV, sV + 1, S * DH * 2, sT0)
    make_srd(a, rWQ, sWQ, sWQ + 1, D * H * DH * 2)
    make_srd(a, rXN, sWS, sWS + 1, XN_BYTES)
    make_srd(a, rO, sWS, sWS + 1, O_BYTES, WS_O)
    make_srd(a, rWU, rWG + 2, rWG + 3, D * DF * 2)
    make_srd(a, rWG, rWG, rWG + 1, D * DF * 2)
    make_srd(a, rH, sWS, sWS + 1, H_BYTES, WS_H)
    a.e("s_cmp_lt_u32 s%d, 28" % sHead)
    a.e("s_cselect_b32 s%d, s%d, 0" % (rH + 2, rH + 2))
    STAMP = P('A_STAMP', 0)
    stamp_n = [0]
    def stamp():
        if not STAMP:
            return
        a.e("s_memtime s[%d:%d]" % (60 + 2 * stamp_n[0], 61 + 2 * stamp_n[0]))
        stamp_n[0] += 1
    stamp()
    a.e("v_lshrrev_b32 v%d, 4, v%d" % (vT0, vLane))
    a.e("v_and_b32 v%d, 15, v%d" % (vT1, vLane))
    a.e("v_lshlrev_b32 v%d, 2, v%d" % (vT2, vT0))
    a.e("v_xor_b32 v%d, v%d, v%d" % (vT2, vT2, vT1))
    a.e("v_lshlrev_b32 v%d, 4, v%d" % (vT2, vT2))
    a.e("v_lshl_add_u32 v%d, v%d, 8, v%d" % (vDV, vT0, vT2))
    a.e("v_lshl_add_u32 v%d, v%d, 13, v%d" % (vDW, vT0, vT2))
    a.e("s_and_b32 s%d, s%d, 1" % (sT0, sW))
    a.e("s_lshl_b32 s%d, s%d, 3" % (sT0, sT0))
    a.e("v_add_u32 v%d, s%d, v%d" % (vT2, sT0, vT0))
    a.e("v_xor_b32 v%d, v%d, v%d" % (vT3, vT2, vT1))
    a.e("v_lshlrev_b32 v%d, 4, v%d" % (vT3, vT3))
    a.e("v_lshl_add_u32 v%d, v%d, 8, v%d" % (vDK0, vT0, vT3))
    a.e("v_add_u32 v%d, 4, v%d" % (vT2, vT2))
    a.e("v_xor_b32 v%d, v%d, v%d" % (vT3, vT2, vT1))
    a.e("v_lshlrev_b32 v%d, 4, v%d" % (vT3, vT3))
    a.e("v_lshl_add_u32 v%d, v%d, 8, v%d" % (vDK1, vT0, vT3))
    a.e("s_lshl_b32 s%d, s%d, 11" % (sT1, sW))
    a.e("s_add_u32 s%d, s%d, %d" % (sM0K, sT1, LDS_K))
    a.e("s_add_u32 s%d, s%d, %d" % (sM0V, sT1, LDS_V))

    def dma_k(slot, soff):
        a.e("s_add_u32 m0, s%d, %d" % (sM0K, slot * 16384))
        a.e("s_nop 0")
        a.e("buffer_load_dwordx4 v%d, s[%d:%d], s%d offen lds" % (vDK0, rK, rK + 3, soff))
        a.e("buffer_load_dwordx4 v%d, s[%d:%d], s%d offen offset:1024 lds" % (vDK1, rK, rK + 3, soff))

    def dma_v(slot, soff):
        a.e("s_add_u32 m0, s%d, %d" % (sM0V, slot * 16384))
        a.e("s_nop 0")
        a.e("buffer_load_dwordx4 v%d, s[%d:%d], s%d offen lds" % (vDV, rV, rV + 3, soff))
        a.e("buffer_load_dwordx4 v%d, s[%d:%d], s%d offen offset:1024 lds" % (vDV, rV, rV + 3, soff))

    vDG = 239
    vFa = 224
    a.e("v_lshrrev_b32 v%d, 3, v%d" % (vT0, vLane))
    a.e("s_movk_i32 s%d, 3584" % sT0)
    a.e("v_mul_lo_u32 v%d, v%d, s%d" % (vT0, vT0, sT0))
    a.e("v_lshrrev_b32 v%d, 2, v%d" % (vT2, vLane))
    a.e("v_and_b32 v%d, 4, v%d" % (vT2, vT2))
    a.e("v_and_b32 v%d, 7, v%d" % (vT3, vLane))
    a.e("v_xor_b32 v%d, v%d, v%d" % (vT2, vT2, vT3))
    a.e("v_lshl_add_u32 v%d, v%d, 4, v%d" % (vDG, vT2, vT0))
    a.e("s_lshl_b32 s%d, s%d, 3" % (sRBk, sQB))
    a.e("s_add_u32 s%d, s%d, s%d" % (sRBk, sRBk, sW))
    a.e("s_lshl_b32 s%d, s%d, 15" % (sXB, sRBk))
    a.e("v_lshlrev_b32 v%d, 4, v%d" % (vOo, vLane))
    a.e("s_mul_i32 s%d, s%d, %d" % (sGB, sW, 16 * 3584))
    a.e("s_lshl_b32 s%d, s%d, 7" % (sT2, sHead))
    a.e("s_add_u32 s%d, s%d, s%d" % (sGB, sGB, sT2))
    a.e("s_lshl_b32 s%d, s%d, 11" % (sGL, sW))
    a.e("s_lshl_b32 s%d, s%d, 17" % (sWB, sW))
    a.e("s_lshl_b32 s%d, s%d, 8" % (sT2, sHead))
    a.e("s_add_u32 s%d, s%d, s%d" % (sWB, sWB, sT2))
    a.e("s_lshl_b32 s%d, s%d, 12" % (sT3, sW))

    def gu_pieces(q):
        ps = []
        for i in range(2):
            for mat, rr in ((0, rWG), (1, rWU)):
                ps.append(["s_add_u32 s%d, s%d, %d" % (sT2, sGB, (128 * q + 8 * i) * 3584),
                           "s_add_u32 m0, s%d, %d" % (sGL, q * 32768 + mat * 16384 + i * 1024),
                           "s_nop 0",
                           "buffer_load_dwordx4 v%d, s[%d:%d], s%d offen lds" % (vDG, rr, rr + 3, sT2)])
        return [(p, ("gu", q)) for p in ps]

    def wq_pieces(q):
        ps = []
        for i in range(4):
            ps.append(["s_add_u32 s%d, s%d, %d" % (sT2, sWB, (128 * q + 4 * i) * 8192),
                       "s_add_u32 m0, s%d, %d" % (sT3, q * 32768 + i * 1024),
                       "s_nop 0",
                       "buffer_load_dwordx4 v%d, s[%d:%d], s%d offen lds" % (vDW, rWQ, rWQ + 3, sT2)])
        return [(p, ("wq", q)) for p in ps]

    def x_pieces(q):
        ps = []
        for ks in range(8 * q, 8 * q + 8):
            ps.append(["s_add_u32 s%d, s%d, %d" % (sT2, sXB, (ks >> 2) * 4096),
                       "buffer_load_dwordx4 %s, v%d, s[%d:%d], s%d offen offset:%d" % (vr(X + 4 * ks, 4), vOo, rXN, rXN + 3, sT2, (ks & 3) * 1024)])
        return [(p, ("x", q)) for p in ps]

    def kv_pieces(is_k, slot, tile):
        m0b = sM0K if is_k else sM0V
        rr = rK if is_k else rV
        v0, v1 = (vDK0, vDK1) if is_k else (vDV, vDV)
        return [(["s_add_u32 s%d, s%d, %d" % (sT2, sT1, tile * 16384), "s_add_u32 m0, s%d, %d" % (m0b, slot * 16384), "s_nop 0",
                  "buffer_load_dwordx4 v%d, s[%d:%d], s%d offen lds" % (v0, rr, rr + 3, sT2)], ("kv",)),
                (["buffer_load_dwordx4 v%d, s[%d:%d], s%d offen offset:1024 lds" % (v1, rr, rr + 3, sT2)], ("kv",))]

    def emit_piece(pc):
        ins, tag = pc
        for t in ins[:-1]:
            a.e(t)
        a.vm(ins[-1], tag)

    sU, sKS = sT0, sJ
    a.e("s_lshl_b32 s%d, s2, 3" % sU)
    a.e("s_add_u32 s%d, s%d, s%d" % (sU, sU, sW))
    a.e("s_lshr_b32 s%d, s%d, 2" % (sKS, sU))
    make_srd(a, rPF, sWS, sWS + 1, W_BYTES, WS_W)
    a.e("s_cmp_lt_u32 s%d, 1472" % sU)
    a.e("s_cselect_b32 s%d, s%d, 0" % (rPF + 2, rPF + 2))
    a.e("s_cselect_b32 s%d, 0x%x, 0" % (sT2, DF * D * 2))
    a.e("s_cmp_lt_u32 s%d, 256" % sKS)
    a.e("s_cselect_b32 s%d, s%d, s%d" % (rPW, rPW, rPW + 2))
    a.e("s_cselect_b32 s%d, s%d, s%d" % (rPW + 1, rPW + 1, rPW + 3))
    a.e("s_cselect_b32 s%d, 0x%x, s%d" % (rPW + 2, H * DH * D * 2, sT2))
    a.e("s_cselect_b32 s%d, 0, 256" % sT2)
    a.e("s_and_b32 s%d, s%d, 0xffff" % (rPW + 1, rPW + 1))
    a.e("s_mov_b32 s%d, 0x00020000" % (rPW + 3))
    a.e("s_sub_u32 s%d, s%d, s%d" % (sT2, sKS, sT2))
    a.e("s_lshl_b32 s%d, s%d, 14" % (sT2, sT2))
    a.e("s_and_b32 s%d, s%d, 3" % (sU, sU))
    a.e("s_lshl_b32 s%d, s%d, 8" % (sC, sU))
    a.e("s_add_u32 s%d, s%d, s%d" % (sT2, sT2, sC))
    WL, WR, pO, pO2, pD = 160, 176, 192, 193, 194
    a.e("v_lshrrev_b32 v%d, 4, v%d" % (vT0, vLane))
    a.e("v_and_b32 v%d, 7, v%d" % (vT1, vLane))
    a.e("v_lshlrev_b32 v%d, 6, v%d" % (pO, vT0))
    a.e("v_lshl_add_u32 v%d, v%d, 3, v%d" % (pO, vT1, pO))
    a.e("v_bfe_u32 v%d, v%d, 3, 1" % (vT2, vLane))
    a.e("v_lshl_add_u32 v%d, v%d, 13, v%d" % (pO, vT2, pO))
    a.e("v_add_u32 v%d, 0x1000, v%d" % (pO2, pO))
    for j in range(8):
        a.vm("buffer_load_dwordx2 %s, v%d, s[%d:%d], s%d offen offset:%d" % (vr(WL + 2 * j, 2), pO if j < 4 else pO2, rPW, rPW + 3, sT2, (j & 3) * 1024), ("wp",))
    a.e("s_mov_b32 s%d, %d" % (sC, 368 * 1024))
    a.e("v_mul_lo_u32 v%d, v%d, s%d" % (pD, vT0, sC))
    a.e("v_and_b32 v%d, 4, v%d" % (vT3, vT1))
    a.e("v_and_b32 v%d, 1, v%d" % (vT4, vT1))
    a.e("v_lshl_add_u32 v%d, v%d, 1, v%d" % (vT3, vT4, vT3))
    a.e("v_bfe_u32 v%d, v%d, 1, 1" % (vT4, vT1))
    a.e("v_add_u32 v%d, v%d, v%d" % (vT3, vT3, vT4))
    a.e("v_lshl_add_u32 v%d, v%d, 6, v%d" % (pD, vT3, pD))
    a.e("v_lshl_add_u32 v%d, v%d, 9, v%d" % (pD, vT2, pD))
    a.e("s_mul_i32 s%d, s%d, %d" % (sU, sU, 4 * 368 * 1024))
    a.e("s_lshl_b32 s%d, s%d, 10" % (sKS, sKS))
    a.e("s_add_u32 s%d, s%d, s%d" % (sKS, sKS, sU))
    for q in range(2):
        for pc in gu_pieces(q) + x_pieces(q):
            emit_piece(pc)
    a.e("s_mov_b32 s%d, 0x05040100" % sU)
    a.e("s_mov_b32 s%d, 0x07060302" % sC)
    a.wait_vm(("wp",))
    for b in range(4):
        for r in range(4):
            lo, hi = WL + 2 * (2 * r) + (b >> 1), WL + 2 * (2 * r + 1) + (b >> 1)
            a.e("v_perm_b32 v%d, v%d, v%d, s%d" % (WR + 4 * b + r, hi, lo, sU if (b & 1) == 0 else sC))
    for b in range(4):
        a.vm("buffer_store_dwordx4 %s, v%d, s[%d:%d], s%d offen offset:%d" % (vr(WR + 4 * b, 4), pD, rPF, rPF + 3, sKS, 16 * b), ("wps",))
    a.e("s_add_u32 s%d, s%d, %d" % (sKoff, sT1, 2 * 16384))
    a.e("s_add_u32 s%d, s%d, %d" % (sVoff, sT1, 2 * 16384))
    a.e("s_lshl_b32 s%d, s%d, 18" % (sOB, sRBk))
    a.e("s_lshl_b32 s%d, s%d, 13" % (sT2, sHead))
    a.e("s_add_u32 s%d, s%d, s%d" % (sOB, sOB, sT2))
    a.e("s_mul_i32 s%d, s%d, %d" % (sHB, sRBk, 112 * 1024))
    a.e("s_lshl_b32 s%d, s%d, 12" % (sT2, sHead))
    a.e("s_add_u32 s%d, s%d, s%d" % (sHB, sHB, sT2))
    tr_lane_off(a, vT2, vLane, vT0, vT1)
    a.e("v_bfe_u32 v%d, v%d, 2, 2" % (vT1, vLane))
    a.e("v_lshrrev_b32 v%d, 5, v%d" % (vT0, vLane))
    a.e("v_lshl_add_u32 v%d, v%d, 3, v%d" % (vT3, vT0, vT1))
    a.e("v_lshl_add_u32 v%d, v%d, 7, v%d" % (vT4, vT3, vT2))
    a.e("v_lshrrev_b32 v%d, 1, v%d" % (vFa + 3, vT1))
    a.e("v_lshlrev_b32 v%d, 6, v%d" % (vFa + 3, vFa + 3))
    a.e("v_add_u32 v%d, v%d, v%d" % (vFa + 0, vT4, vFa + 3))
    a.e("v_xor_b32 v%d, 64, v%d" % (vFa + 3, vFa + 3))
    a.e("v_add_u32 v%d, v%d, v%d" % (vFa + 1, vT4, vFa + 3))
    a.e("v_add_u32 v%d, 0x4000, v%d" % (vFa + 2, vFa + 0))
    a.e("v_add_u32 v%d, 0x4000, v%d" % (vFa + 3, vFa + 1))
    a.e("v_lshl_add_u32 v%d, v%d, 8, v%d" % (vT3, vT3, vT2))
    a.e("v_lshl_add_u32 v%d, v%d, 2, v%d" % (vT4, vT0, vT1))
    a.e("v_lshl_add_u32 v%d, v%d, 8, v%d" % (vT4, vT4, vT2))
    for db in range(4):
        a.e("v_xor_b32 v%d, %d, v%d" % (vT2, db, vT1))
        a.e("v_lshlrev_b32 v%d, 6, v%d" % (vT2, vT2))
        a.e("v_add_u32 v%d, v%d, v%d" % (vWa + db, vT3, vT2))
        a.e("v_add_u32 v%d, v%d, v%d" % (vVa + db, vT4, vT2))
    a.e("s_mov_b32 s%d, %s" % (sC, f32(math.log2(math.e) / math.sqrt(DH))))
    stamp()
    ACC4 = 160
    PFR = 128
    NP = 8
    PDQ = 5
    pctr = [0]

    def gemm_quarter(qt, addr, rowbytes, pieces=()):
        seq = [(ks, b) for ks in range(8 * qt, 8 * qt + 8) for b in range(4)]
        base = pctr[0]

        def pfrag(n):
            return PFR + 4 * ((base + n) % NP)

        def pissue(n):
            ks, b = seq[n]
            for t in range(2):
                off = (qt * 32768 + (16 * (ks - 8 * qt) + 4 * t) * rowbytes) & 0xffff
                a.lds("ds_read_b64_tr_b16 %s, v%d offset:%d" % (vr(pfrag(n) + 2 * t, 2), addr + b, off), ("q", base + n))

        for n in range(PDQ):
            pissue(n)
        for n in range(len(seq)):
            if n + PDQ < len(seq):
                pissue(n + PDQ)
            ks, b = seq[n]
            a.wait_lds(("q", base + n))
            acc = ACC4 + 16 * b
            a.e("v_mfma_f32_32x32x16_bf16 %s, %s, %s, %s" % (vr(acc, 16), vr(pfrag(n), 4), vr(X + 4 * ks, 4), "0" if ks == 0 else vr(acc, 16)))
            if n % 2 == 0 and n // 2 < len(pieces):
                emit_piece(pieces[n // 2])
        assert len(pieces) <= 16
        pctr[0] += len(seq)

    fp = [gu_pieces(2) + x_pieces(2), gu_pieces(3) + x_pieces(3) + wq_pieces(0), wq_pieces(1) + kv_pieces(True, 2, 0) + kv_pieces(True, 3, 1), wq_pieces(2)]
    for qt in range(4):
        a.wait_vm(("x", qt))
        a.e("s_barrier")
        if qt == 2:
            for b in range(4):
                a.e("v_add_u32 v%d, 0x10000, v%d" % (vFa + b, vFa + b))
        gemm_quarter(qt, vFa, 128, fp[qt])
    a.e("s_nop 15")
    a.e("s_nop 3")
    KK = -2.0 * math.sqrt(2.0 / math.pi) * math.log2(math.e)
    a.e("s_mov_b32 s%d, %s" % (sT2, f32(KK * 0.044715)))
    a.e("v_mov_b32 v%d, %s" % (vT4, f32(KK)))
    for cs in range(2):
        G = ACC4 + 16 * cs
        U = ACC4 + 32 + 16 * cs
        for p in range(8):
            g0, g1, u0, u1 = G + 2 * p, G + 2 * p + 1, U + 2 * p, U + 2 * p + 1
            round_bf16_pair(a, g0, g1, g0, g1, vT0)
            round_bf16_pair(a, u0, u1, u0, u1, vT0)
            for g, t in ((g0, vT0), (g1, vT1)):
                a.e("v_mul_f32 v%d, v%d, v%d" % (t, g, g))
                a.e("v_fma_f32 v%d, v%d, s%d, v%d" % (t, t, sT2, vT4))
                a.e("v_mul_f32 v%d, v%d, v%d" % (t, t, g))
            a.e("v_exp_f32 v%d, v%d" % (vT0, vT0))
            a.e("v_exp_f32 v%d, v%d" % (vT1, vT1))
            a.e("s_nop 0")
            a.e("v_add_f32 v%d, 1.0, v%d" % (vT0, vT0))
            a.e("v_add_f32 v%d, 1.0, v%d" % (vT1, vT1))
            a.e("v_rcp_f32 v%d, v%d" % (vT0, vT0))
            a.e("v_rcp_f32 v%d, v%d" % (vT1, vT1))
            a.e("s_nop 0")
            a.e("v_mul_f32 v%d, v%d, v%d" % (g0, g0, vT0))
            a.e("v_mul_f32 v%d, v%d, v%d" % (g1, g1, vT1))
            round_bf16_pair(a, g0, g1, g0, g1, vT0)
            a.e("v_mul_f32 v%d, v%d, v%d" % (g0, g0, u0))
            a.e("v_mul_f32 v%d, v%d, v%d" % (g1, g1, u1))
            a.e("v_cvt_pk_bf16_f32 v%d, v%d, v%d" % (G + p, g0, g1))
        a.vm("buffer_store_dwordx4 %s, v%d, s[%d:%d], s%d offen offset:%d" % (vr(G, 4), vOo, rH, rH + 3, sHB, cs * 2048), ("st",))
        a.vm("buffer_store_dwordx4 %s, v%d, s[%d:%d], s%d offen offset:%d" % (vr(G + 4, 4), vOo, rH, rH + 3, sHB, cs * 2048 + 1024), ("st",))
    stamp()
    qp = [wq_pieces(3), kv_pieces(False, 0, 0) + kv_pieces(False, 1, 1), [], []]
    for qt in range(4):
        a.wait_vm(("wq", qt))
        a.e("s_barrier")
        if qt == 2:
            for db in range(4):
                a.e("v_add_u32 v%d, 0x10000, v%d" % (vWa + db, vWa + db))
        gemm_quarter(qt, vWa, 256, qp[qt])
    a.e("s_nop 15")
    a.e("s_nop 3")
    for db in range(4):
        for p in range(8):
            a.e("v_mul_f32 v%d, s%d, v%d" % (ACC4 + 16 * db + 2 * p, sC, ACC4 + 16 * db + 2 * p))
            a.e("v_mul_f32 v%d, s%d, v%d" % (ACC4 + 16 * db + 2 * p + 1, sC, ACC4 + 16 * db + 2 * p + 1))
            a.e("v_cvt_pk_bf16_f32 v%d, v%d, v%d" % (Q + 8 * db + p, ACC4 + 16 * db + 2 * p, ACC4 + 16 * db + 2 * p + 1))
    a.e("v_lshrrev_b32 v%d, 5, v%d" % (vT0, vLane))
    a.e("v_and_b32 v%d, 31, v%d" % (vT1, vLane))
    a.e("v_and_b32 v%d, 15, v%d" % (vT2, vLane))
    a.e("v_xor_b32 v%d, v%d, v%d" % (vT2, vT2, vT0))
    a.e("v_lshlrev_b32 v%d, 8, v%d" % (vT1, vT1))
    a.e("v_add_u32 v%d, 0x%x, v%d" % (vT1, LDS_K, vT1))
    for ks in range(8):
        a.e("v_xor_b32 v%d, %d, v%d" % (vT3, 2 * ks, vT2))
        a.e("v_lshl_add_u32 v%d, v%d, 4, v%d" % (vKa + ks, vT3, vT1))
    a.e("s_waitcnt vmcnt(0)")
    a.e("s_barrier")
    dma_k(0, sKoff)
    a.e("s_add_u32 s%d, s%d, 16384" % (sKoff, sKoff))
    a.e("s_add_u32 m0, s%d, %d" % (sM0K, 1 * 16384))
    a.e("s_nop 0")
    a.e("buffer_load_dwordx4 v%d, s[%d:%d], s%d offen lds" % (vDK0, rK, rK + 3, sKoff))
    for i in range(64):
        a.e("v_mov_b32 v%d, 0" % (O + i))
    NEGM = 192
    for i in range(16):
        a.e("v_mov_b32 v%d, 0" % (NEGM + i))
    a.e("v_mov_b32 v%d, 0" % vL0)
    a.e("v_mov_b32 v%d, 0" % vL1)

    fr_ctr = [0]

    def kread(kslot, m):
        kb, ks = m >> 3, m & 7
        f = FR + 4 * (fr_ctr[0] % NFR)
        tag = ("f", fr_ctr[0])
        fr_ctr[0] += 1
        a.lds("ds_read_b128 %s, v%d offset:%d" % (vr(f, 4), vKa + ks, kslot * 16384 + kb * 8192), tag)
        return (f, tag)

    def vread(vslot, m):
        s_, db = m >> 2, m & 3
        f = FR + 4 * (fr_ctr[0] % NFR)
        tag = ("f", fr_ctr[0])
        fr_ctr[0] += 1
        for t in range(2):
            a.lds("ds_read_b64_tr_b16 %s, v%d offset:%d" % (vr(f + 2 * t, 2), vVa + db, vslot * 16384 + (16 * s_ + 8 * t) * 256), tag)
        return (f, tag)

    def softmax_ops(cur):
        ops = []
        for g in range(8):
            b = cur + 4 * g
            for i in range(4):
                ops.append("v_exp_f32 v%d, v%d" % (b + i, b + i))
            for i in range(4):
                l = vL0 if i % 2 == 0 else vL1
                ops.append("v_add_f32 v%d, v%d, v%d" % (l, l, b + i))
            ops.append("v_cvt_pk_bf16_f32 v%d, v%d, v%d" % (cur + 2 * g, b, b + 1))
            ops.append("v_cvt_pk_bf16_f32 v%d, v%d, v%d" % (cur + 2 * g + 1, b + 2, b + 3))
        return ops

    def max_ops(nxt):
        ops = []
        ops.append("v_max3_f32 v%d, v%d, v%d, v%d" % (vT0, nxt + 0, nxt + 1, nxt + 2))
        ops.append("v_max3_f32 v%d, v%d, v%d, v%d" % (vT1, nxt + 16, nxt + 17, nxt + 18))
        for i in range(3, 15, 2):
            ops.append("v_max3_f32 v%d, v%d, v%d, v%d" % (vT0, vT0, nxt + i, nxt + i + 1))
            ops.append("v_max3_f32 v%d, v%d, v%d, v%d" % (vT1, vT1, nxt + 16 + i, nxt + 16 + i + 1))
        ops.append("v_max3_f32 v%d, v%d, v%d, v%d" % (vT0, vT0, nxt + 15, nxt + 31))
        ops.append("v_max_f32 v%d, v%d, v%d" % (vT0, vT0, vT1))
        ops.append("v_mov_b32 v%d, v%d" % (vT1, vT0))
        ops.append("s_nop 1")
        ops.append("v_permlane32_swap_b32 v%d, v%d" % (vT0, vT1))
        ops.append("s_nop 1")
        ops.append("v_max_f32 v%d, v%d, v%d" % (vT0, vT0, vT1))
        return ops

    rescale_sites = []

    def rescale_body(buf, first):
        if not first:
            a.e("v_max_f32 v%d, 0, v%d" % (vT0, vT0))
        a.e("v_sub_f32 v%d, 0, v%d" % (vT2, vT0))
        a.e("v_exp_f32 v%d, v%d" % (vT2, vT2))
        a.e("v_sub_f32 v%d, v%d, v%d" % (NEGM, NEGM, vT0))
        for i in range(1, 16):
            a.e("v_mov_b32 v%d, v%d" % (NEGM + i, NEGM))
        for i in range(32):
            a.e("v_sub_f32 v%d, v%d, v%d" % (buf + i, buf + i, vT0))
        if not first:
            for i in range(64):
                a.e("v_mul_f32 v%d, v%d, v%d" % (O + i, O + i, vT2))
            a.e("v_mul_f32 v%d, v%d, v%d" % (vL0, vL0, vT2))
            a.e("v_mul_f32 v%d, v%d, v%d" % (vL1, vL1, vT2))
        a.e("s_nop 1")

    def rescale_check(buf):
        n = a.nlabel
        a.nlabel += 1
        a.e("v_cmp_lt_f32 vcc, %s, v%d" % (f32(float(P('A_T', 48))), vT0))
        a.e("s_cbranch_vccnz L_resc_%d" % n)
        a.label("L_resc_ret_%d" % n)
        rescale_sites.append((n, buf))

    PD = P('A_PD', 4)
    q = [kread(2, m) for m in range(PD)]
    for m in range(16):
        if m + PD < 16:
            q.append(kread(2, m + PD))
        f, tag = q[m]
        a.wait_lds(tag)
        kb, ks = m >> 3, m & 7
        acc = SB[0] + 16 * kb
        a.e("v_mfma_f32_32x32x16_bf16 %s, %s, %s, %s" % (vr(acc, 16), vr(f, 4), vr(Q + 4 * ks, 4), "0" if ks == 0 else vr(acc, 16)))
    a.e("s_nop 15")
    a.e("s_nop 3")
    for op in max_ops(SB[0]):
        a.e(op)
    rescale_body(SB[0], True)
    carry = [kread(3, m) for m in range(PD)]
    a.e("s_mov_b32 s%d, 0" % sJ)
    stamp()
    if STAMP:
        a.e("s_memrealtime s[80:81]")
    a.nolds = True
    a.label("L_attn_loop")
    UNR = 4
    for u in range(UNR):
        cur, nxt = SB[u & 1], SB[(u + 1) & 1]
        if u == UNR - 1:
            a.e("s_cmp_eq_u32 s%d, %d" % (sJ, 32 - UNR))
            a.e("s_cbranch_scc1 L_attn_tail")
            tail_pend = list(a.pend)
            tail_ctr = fr_ctr[0]
        kslot = (u + 1 + 2) & 3
        kslot_n = (u + 2 + 2) & 3
        vslot = u & 3
        sm = softmax_ops(cur)
        mx = max_ops(nxt)
        fill = [[] for _ in range(32)]
        CE = P('A_CE', 16)
        cost = lambda op: CE if op.startswith('v_exp') else (2 if op.startswith('s_nop') else 4)
        NS = P('A_NS', 27)
        tot = sum(cost(o) for o in sm)
        cum = 0
        for op in sm:
            fill[min(int((cum + cost(op) / 2) * NS / tot), NS - 1)].append(op)
            cum += cost(op)
        tot = sum(cost(o) for o in mx)
        cum = 0
        for op in mx:
            fill[min(NS + int((cum + cost(op) / 2) * (32 - NS) / tot), 31)].append(op)
            cum += cost(op)
        for t in range(32):
            for op in fill[t]:
                if op.startswith('v_cvt'):
                    dreg = int(op.split()[1].strip(',')[1:]) - cur
                    assert t <= 16 + 4 * (dreg // 4) - 1, (t, op)
        frags = list(carry)
        carry = []
        dpos = {P('A_D0', 1): 1, P('A_D1', 7): 2, P('A_D2', 13): 3}
        for m in range(32):
            mm = m + PD
            if mm < 16:
                frags.append(kread(kslot, mm))
            elif mm < 32:
                frags.append(vread(vslot, mm - 16))
            else:
                carry.append(kread(kslot_n, mm - 32))
            f, tag = frags[m]
            a.wait_lds(tag)
            if m < 16:
                kb, ks = m >> 3, m & 7
                acc = nxt + 16 * kb
                a.e("v_mfma_f32_32x32x16_bf16 %s, %s, %s, %s" % (vr(acc, 16), vr(f, 4), vr(Q + 4 * ks, 4), vr(NEGM, 16) if ks == 0 else vr(acc, 16)))
            else:
                s_, db = (m - 16) >> 2, (m - 16) & 3
                acc = O + 16 * db
                a.e("v_mfma_f32_32x32x16_bf16 %s, %s, %s, %s" % (vr(acc, 16), vr(f, 4), vr(cur + 4 * s_, 4), vr(acc, 16)))
            for op in fill[m]:
                if P('X_NOVALU', 0) and not op.startswith('s_'):
                    continue
                if P('X_NOEXP', 0) and op.startswith('v_exp'):
                    continue
                a.e(op)
            if m in dpos and not P('X_NODMA', 0):
                pc = dpos[m]
                if pc == 1:
                    a.e("buffer_load_dwordx4 v%d, s[%d:%d], s%d offen offset:1024 lds" % (vDK1, rK, rK + 3, sKoff))
                    a.e("s_add_u32 s%d, s%d, 16384" % (sKoff, sKoff))
                elif pc == 2:
                    a.e("s_add_u32 m0, s%d, %d" % (sM0V, ((u + 2) & 3) * 16384))
                    a.e("s_nop 0")
                    a.e("buffer_load_dwordx4 v%d, s[%d:%d], s%d offen lds" % (vDV, rV, rV + 3, sVoff))
                else:
                    a.e("buffer_load_dwordx4 v%d, s[%d:%d], s%d offen offset:1024 lds" % (vDV, rV, rV + 3, sVoff))
                    a.e("s_add_u32 s%d, s%d, 16384" % (sVoff, sVoff))
            if m == 32 - PD - 1:
                if not P('X_NOBAR2', 0):
                    a.e("s_waitcnt vmcnt(4)")
                    a.e("s_barrier")
            if m == 32 - PD + 1 and not P('X_NODMA', 0):
                a.e("s_add_u32 m0, s%d, %d" % (sM0K, ((u + 4 + 2) & 3) * 16384))
                a.e("s_nop 0")
                a.e("buffer_load_dwordx4 v%d, s[%d:%d], s%d offen lds" % (vDK0, rK, rK + 3, sKoff))
        rescale_check(nxt)
    a.e("s_add_u32 s%d, s%d, %d" % (sJ, sJ, UNR))
    a.e("s_branch L_attn_loop")
    a.label("L_attn_tail")
    a.pend = tail_pend
    fr_ctr[0] = tail_ctr
    a.wait_lds_all()
    cur = SB[(UNR - 1) & 1]
    sm = softmax_ops(cur)
    per = len(sm) // 4
    vq = [vread((UNR - 1) & 3, m) for m in range(PD)]
    for op in sm[:per]:
        a.e(op)
    for m in range(16):
        if m + PD < 16:
            vq.append(vread((UNR - 1) & 3, m + PD))
        f, tag = vq[m]
        a.wait_lds(tag)
        s_, db = m >> 2, m & 3
        a.e("v_mfma_f32_32x32x16_bf16 %s, %s, %s, %s" % (vr(O + 16 * db, 16), vr(f, 4), vr(cur + 4 * s_, 4), vr(O + 16 * db, 16)))
        if s_ < 3:
            seg = sm[per * (s_ + 1): per * (s_ + 2)]
            k0, k1 = len(seg) * db // 4, len(seg) * (db + 1) // 4
            for op in seg[k0:k1]:
                a.e(op)
            if db == 3:
                a.e("s_nop 1")
    a.label("L_attn_done")
    a.nolds = False
    stamp()
    if STAMP:
        a.e("s_memrealtime s[82:83]")
    a.wait_lds_all()
    a.e("s_nop 15")
    a.e("s_nop 3")
    a.e("v_add_f32 v%d, v%d, v%d" % (vL0, vL0, vL1))
    a.e("v_mov_b32 v%d, v%d" % (vT1, vL0))
    a.e("s_nop 1")
    a.e("v_permlane32_swap_b32 v%d, v%d" % (vL0, vT1))
    a.e("s_nop 1")
    a.e("v_add_f32 v%d, v%d, v%d" % (vL0, vL0, vT1))
    a.e("v_rcp_f32 v%d, v%d" % (vL0, vL0))
    a.e("s_nop 0")
    for db in range(4):
        for i in range(16):
            a.e("v_mul_f32 v%d, v%d, v%d" % (O + 16 * db + i, O + 16 * db + i, vL0))
        for p in range(8):
            a.e("v_cvt_pk_bf16_f32 v%d, v%d, v%d" % (O + 16 * db + p, O + 16 * db + 2 * p, O + 16 * db + 2 * p + 1))
        if db == 2:
            a.e("s_add_u32 s%d, s%d, 4096" % (sOB, sOB))
        a.e("buffer_store_dwordx4 %s, v%d, s[%d:%d], s%d offen offset:%d" % (vr(O + 16 * db, 4), vOo, rO, rO + 3, sOB, (db & 1) * 2048))
        a.e("buffer_store_dwordx4 %s, v%d, s[%d:%d], s%d offen offset:%d" % (vr(O + 16 * db + 4, 4), vOo, rO, rO + 3, sOB, (db & 1) * 2048 + 1024))
    if STAMP:
        stamp()
        a.e("s_waitcnt vmcnt(0) lgkmcnt(0)")
        stamp()
        a.e("s_waitcnt lgkmcnt(0)")
        make_srd(a, 88, sWS, sWS + 1, 1 << 20, 0x3000000)
        a.e("s_lshl_b32 s%d, s2, 3" % sT0)
        a.e("s_add_u32 s%d, s%d, s%d" % (sT0, sT0, sW))
        a.e("s_lshl_b32 s%d, s%d, 6" % (sT0, sT0))
        a.e("v_mov_b32 v%d, s%d" % (vT0, sT0))
        a.e("s_sub_u32 s%d, s82, s80" % (60 + 2 * stamp_n[0]))
        for i in range(stamp_n[0] + 1):
            a.e("v_mov_b32 v%d, s%d" % (vT1, 60 + 2 * i))
            a.e("buffer_store_dword v%d, v%d, s[88:91], 0 offen offset:%d" % (vT1, vT0, 4 * i))
            a.e("s_nop 1")
    a.e("s_branch L_attn_end")
    for n, buf in rescale_sites:
        a.label("L_resc_%d" % n)
        a.e("s_nop 15")
        a.e("s_nop 3")
        rescale_body(buf, False)
        a.e("s_branch L_resc_ret_%d" % n)
    a.label("L_attn_end")
    a.e("s_endpgm")
    return name, (NWG, 512, 163840), 256


def gen_out(a):
    name = "outp_kernel"
    kernel_header(a, name)
    NWG = 256
    sX, sWO, sWD, sOut, sWS = 4, 6, 8, 10, 12
    rX, rWO, rWD, rOut, rOW, rHW = 16, 20, 24, 28, 32, 36
    sTB, sNB, sW, sT0, sT1, sT2 = 40, 41, 42, 43, 44, 45
    sLB = 46
    sAct = [47, 48]
    sWt = [49, 50]
    a.e("s_cmp_ge_u32 s2, %d" % NWG)
    a.e("s_cbranch_scc1 L_outp_end")
    a.e("s_load_dwordx2 s[%d:%d], s[0:1], 0" % (sX, sX + 1))
    a.e("s_load_dwordx2 s[%d:%d], s[0:1], 32" % (sWO, sWO + 1))
    a.e("s_load_dwordx2 s[%d:%d], s[0:1], 64" % (sWD, sWD + 1))
    a.e("s_load_dwordx2 s[%d:%d], s[0:1], 72" % (sOut, sOut + 1))
    a.e("s_load_dwordx2 s[%d:%d], s[0:1], 88" % (sWS, sWS + 1))
    NST = P('C_NST', 3)
    ACC = [0, 64]
    FB = 128
    vb = FB + 32 * NST
    vLane, vT0, vT1, vT2, vT3, vT4 = vb, vb + 1, vb + 2, vb + 3, vb + 4, vb + 5
    vL16 = vb + 9
    vXo = vb + 10
    vR = vb + 11
    XR = vb + 12
    NV = vb + 16
    a.e("v_and_b32 v%d, 63, v0" % vLane)
    a.e("v_lshrrev_b32 v%d, 6, v0" % vT0)
    a.e("s_and_b32 s%d, s2, 31" % sTB)
    a.e("s_lshr_b32 s%d, s2, 5" % sNB)
    a.e("v_readfirstlane_b32 s%d, v%d" % (sW, vT0))
    a.e("s_waitcnt lgkmcnt(0)")
    make_srd(a, rX, sX, sX + 1, S * D * 2)
    make_srd(a, rWO, sWS, sWS + 1, W_BYTES, WS_W)
    make_srd(a, rOut, sOut, sOut + 1, S * D * 2)
    make_srd(a, rOW, sWS, sWS + 1, O_BYTES, WS_O)
    make_srd(a, rHW, sWS, sWS + 1, H_BYTES, WS_H)
    a.e("v_lshlrev_b32 v%d, 4, v%d" % (vL16, vLane))
    RBS = (256 * 1024, 112 * 1024)
    for mi in range(2):
        a.e("s_mul_i32 s%d, s%d, %d" % (sAct[mi], sTB, 2 * RBS[mi]))
        a.e("s_lshl_b32 s%d, s%d, 11" % (sT0, sW))
        a.e("s_add_u32 s%d, s%d, s%d" % (sAct[mi], sAct[mi], sT0))
    a.e("s_mul_i32 s%d, s%d, %d" % (sWt[0], sNB, 2 * 368 * 1024))
    a.e("s_lshl_b32 s%d, s%d, 11" % (sT0, sW))
    a.e("s_add_u32 s%d, s%d, s%d" % (sWt[0], sWt[0], sT0))
    chunks = [(0, c) for c in range(16)] + [(1, c) for c in range(7)]

    def issue(n):
        mi, c = chunks[n]
        st = n % NST
        rAct = (rOW, rHW)[mi]
        for nb in range(2):
            a.e("s_add_u32 s%d, s%d, %d" % (sT0, sWt[0], (mi * 256 + c * 16) * 1024 + nb * 368 * 1024))
            for ks in range(2):
                a.e("buffer_load_dwordx4 %s, v%d, s[%d:%d], s%d offen offset:%d" % (vr(FB + 32 * st + 16 + 8 * ks + 4 * nb, 4), vL16, rWO, rWO + 3, sT0, ks * 1024))
        for tb in range(2):
            a.e("s_add_u32 s%d, s%d, %d" % (sT0, sAct[mi], c * 16384 + tb * RBS[mi]))
            for ks in range(2):
                a.e("buffer_load_dwordx4 %s, v%d, s[%d:%d], s%d offen offset:%d" % (vr(FB + 32 * st + 8 * ks + 4 * tb, 4), vL16, rAct, rAct + 3, sT0, ks * 1024))

    for n in range(NST - 1):
        issue(n)
    for n in range(len(chunks)):
        if n + NST - 1 < len(chunks):
            issue(n + NST - 1)
        left = min(NST - 1, len(chunks) - 1 - n)
        a.e("s_waitcnt vmcnt(%d)" % (8 * left))
        mi, c = chunks[n]
        st = n % NST
        for ks in range(2):
            for nb in range(2):
                for tb in range(2):
                    d = ACC[mi] + 16 * (nb * 2 + tb)
                    a.e("v_mfma_f32_32x32x16_bf16 %s, %s, %s, %s" % (vr(d, 16), vr(FB + 32 * st + 16 + 8 * ks + 4 * nb, 4), vr(FB + 32 * st + 8 * ks + 4 * tb, 4), "0" if (c == 0 and ks == 0) else vr(d, 16)))
    a.e("s_nop 15")
    a.e("s_nop 3")
    a.e("s_bfe_u32 s%d, s%d, 0x10001" % (sT0, sW))
    a.e("s_lshl_b32 s%d, s%d, 5" % (sT0, sT0))
    a.e("s_lshl_b32 s%d, s%d, 6" % (sT1, sTB))
    a.e("s_add_u32 s%d, s%d, s%d" % (sT0, sT0, sT1))
    a.e("v_and_b32 v%d, 31, v%d" % (vT0, vLane))
    a.e("v_add_u32 v%d, s%d, v%d" % (vT0, sT0, vT0))
    a.e("v_lshrrev_b32 v%d, 5, v%d" % (vT1, vLane))
    a.e("v_lshlrev_b32 v%d, 4, v%d" % (vT1, vT1))
    a.e("v_lshl_add_u32 v%d, v%d, 10, v%d" % (vXo, vT0, vT1))
    a.e("s_lshr_b32 s%d, s%d, 2" % (sT0, sW))
    a.e("s_lshl_b32 s%d, s%d, 6" % (sT0, sT0))
    a.e("s_and_b32 s%d, s%d, 1" % (sT1, sW))
    a.e("s_lshl_b32 s%d, s%d, 5" % (sT1, sT1))
    a.e("s_add_u32 s%d, s%d, s%d" % (sT0, sT0, sT1))
    a.e("s_lshl_b32 s%d, s%d, 7" % (sT1, sNB))
    a.e("s_add_u32 s%d, s%d, s%d" % (sT0, sT0, sT1))
    a.e("v_add_u32 v%d, s%d, v%d" % (vXo, sT0, vXo))
    a.e("buffer_load_dwordx4 %s, v%d, s[%d:%d], 0 offen" % (vr(XR, 4), vXo, rX, rX + 3))
    a.e("s_lshl_b32 s%d, s%d, 14" % (sT0, sW))
    a.e("v_add_u32 v%d, s%d, v%d" % (vT0, sT0, vL16))
    a.e("s_lshl_b32 s%d, s%d, 11" % (sT0, sW))
    a.e("v_add_u32 v%d, s%d, v%d" % (vR, sT0, vL16))
    a.e("v_add_u32 v%d, 0x10000, v%d" % (vT4, vR))
    for part in range(2):
        a.e("s_barrier")
        for i in range(16):
            a.e("ds_write_b128 v%d, %s offset:%d" % (vT0, vr(ACC[part] + 4 * i, 4), i * 1024))
        a.e("s_waitcnt lgkmcnt(0)")
        a.e("s_barrier")
        for src in range(8):
            for i in range(2):
                a.e("ds_read_b128 %s, v%d offset:%d" % (vr(ACC[part] + 8 * src + 4 * i, 4), vR if src < 4 else vT4, (src & 3) * 16384 + i * 1024))
            if src == 6:
                a.e("s_waitcnt lgkmcnt(0)")
        a.e("s_waitcnt lgkmcnt(0)")
        B = ACC[part]
        for i in range(8):
            a.e("v_add_f32 v%d, v%d, v%d" % (B + i, B + i, B + 8 + i))
            a.e("v_add_f32 v%d, v%d, v%d" % (B + 16 + i, B + 16 + i, B + 24 + i))
            a.e("v_add_f32 v%d, v%d, v%d" % (B + 32 + i, B + 32 + i, B + 40 + i))
            a.e("v_add_f32 v%d, v%d, v%d" % (B + 48 + i, B + 48 + i, B + 56 + i))
        for i in range(8):
            a.e("v_add_f32 v%d, v%d, v%d" % (B + i, B + i, B + 16 + i))
            a.e("v_add_f32 v%d, v%d, v%d" % (B + 32 + i, B + 32 + i, B + 48 + i))
        for i in range(8):
            a.e("v_add_f32 v%d, v%d, v%d" % (B + i, B + i, B + 32 + i))
    a.e("s_waitcnt vmcnt(0)")
    a.e("s_mov_b32 s%d, %s" % (sT2, f32(-math.log2(math.e))))
    for p in range(4):
        s0, s1, f0, f1 = 2 * p, 2 * p + 1, 64 + 2 * p, 64 + 2 * p + 1
        round_bf16_pair(a, s0, s1, s0, s1, vT0)
        round_bf16_pair(a, f0, f1, f0, f1, vT0)
        a.e("v_mul_f32 v%d, s%d, v%d" % (vT0, sT2, f0))
        a.e("v_mul_f32 v%d, s%d, v%d" % (vT1, sT2, f1))
        a.e("v_exp_f32 v%d, v%d" % (vT0, vT0))
        a.e("v_exp_f32 v%d, v%d" % (vT1, vT1))
        a.e("s_nop 0")
        a.e("v_add_f32 v%d, 1.0, v%d" % (vT0, vT0))
        a.e("v_add_f32 v%d, 1.0, v%d" % (vT1, vT1))
        a.e("v_rcp_f32 v%d, v%d" % (vT0, vT0))
        a.e("v_rcp_f32 v%d, v%d" % (vT1, vT1))
        a.e("s_nop 0")
        a.e("v_mul_f32 v%d, v%d, v%d" % (f0, f0, vT0))
        a.e("v_mul_f32 v%d, v%d, v%d" % (f1, f1, vT1))
        round_bf16_pair(a, f0, f1, f0, f1, vT0)
        a.e("v_mul_f32 v%d, v%d, v%d" % (s0, s0, f0))
        a.e("v_mul_f32 v%d, v%d, v%d" % (s1, s1, f1))
        round_bf16_pair(a, s0, s1, s0, s1, vT0)
        a.e("v_lshlrev_b32 v%d, 16, v%d" % (vT0, XR + p))
        a.e("v_and_b32 v%d, 0xffff0000, v%d" % (vT1, XR + p))
        a.e("v_add_f32 v%d, v%d, v%d" % (s0, s0, vT0))
        a.e("v_add_f32 v%d, v%d, v%d" % (s1, s1, vT1))
        a.e("v_cvt_pk_bf16_f32 v%d, v%d, v%d" % (XR + p, s0, s1))
    a.e("buffer_store_dwordx4 %s, v%d, s[%d:%d], 0 offen" % (vr(XR, 4), vXo, rOut, rOut + 3))
    a.label("L_outp_end")
    a.e("s_endpgm")
    return name, (NWG, 512, 131072), NV


def main():
    a = Asm()
    ks = []
    for g in (gen_ln, gen_attn, gen_out):
        a.pend = []
        ks.append(g(a))
    head = []
    for name, (nwg, blk, lds), _ in ks:
        head.append("; @launch kernel=%s grid=(%d,1,1) block=(%d,1,1) lds=%d" % (name, nwg, blk, lds))
    head.append('.amdgcn_target "amdgcn-amd-amdhsa--gfx950"')
    head.append(".text")
    tail = ['.section .rodata,"a"']
    for name, _, vg in ks:
        tail.append(".p2align 6")
        tail.append(kernel_desc(name, vg))
    open(OUT, "w").write("\n".join(head + a.lines + tail) + "\n")


if __name__ == "__main__":
    main()
```

```python
import math, struct, sys, os
P = lambda k, d: int(os.environ.get(k, d))

OUT = os.environ.get("GEN_OUT", "recurrent_scan__mha_block_cached__glu_gated_geglu__prompt.s")

S = 2048; D = 512; H = 32; DH = 128; DF = 1792
WS_XN = 0
WS_H = 0x200000
WS_O = 0x1000000
WS_W = 0x2000000
W_BYTES = 16 * 368 * 1024
XN_BYTES = S * D * 2
H_BYTES = S * DF * 2
O_BYTES = S * H * DH * 2


def f32(x):
    return "0x%08x" % struct.unpack("<I", struct.pack("<f", x))[0]


class Asm:
    def __init__(self):
        self.lines = []
        self.pend = []
        self.nlabel = 0
        self.nolds = False
        self.vpend = []

    def e(self, s):
        self.lines.append("    " + s)

    def c(self, s):
        self.lines.append("    ; " + s)

    def label(self, name):
        self.lines.append(name + ":")

    def raw(self, s):
        self.lines.append(s)

    def lds(self, text, tag):
        if P('X_NOLDS', 0) and self.nolds:
            return
        self.e(text)
        self.pend.append(tag)
        assert len(self.pend) <= 15, "too many outstanding lgkm ops"

    def wait_lds(self, tag):
        if tag not in self.pend:
            return
        idx = len(self.pend) - 1 - self.pend[::-1].index(tag)
        n = len(self.pend) - idx - 1
        self.e("s_waitcnt lgkmcnt(%d)" % n)
        self.pend = self.pend[idx + 1:]

    def vm(self, text, tag):
        self.e(text)
        self.vpend.append(tag)

    def wait_vm(self, tag):
        if tag not in self.vpend:
            return
        idx = len(self.vpend) - 1 - self.vpend[::-1].index(tag)
        n = len(self.vpend) - idx - 1
        self.e("s_waitcnt vmcnt(%d)" % n)
        self.vpend = self.vpend[idx + 1:]

    def wait_lds_all(self):
        if self.pend:
            self.e("s_waitcnt lgkmcnt(0)")
        self.pend = []


def vr(a, n):
    return "v[%d:%d]" % (a, a + n - 1)


def sr(a, n):
    return "s[%d:%d]" % (a, a + n - 1)


def make_srd(a, d, lo, hi, nbytes, add=0):
    if add:
        a.e("s_add_u32 s%d, s%d, 0x%x" % (d, lo, add))
        a.e("s_addc_u32 s%d, s%d, 0" % (d + 1, hi))
        a.e("s_and_b32 s%d, s%d, 0xffff" % (d + 1, d + 1))
    else:
        a.e("s_mov_b32 s%d, s%d" % (d, lo))
        a.e("s_and_b32 s%d, s%d, 0xffff" % (d + 1, hi))
    a.e("s_mov_b32 s%d, 0x%x" % (d + 2, nbytes))
    a.e("s_mov_b32 s%d, 0x00020000" % (d + 3))


def make_srd_s(a, d, lo, hi, nbytes, soff):
    a.e("s_add_u32 s%d, s%d, s%d" % (d, lo, soff))
    a.e("s_addc_u32 s%d, s%d, 0" % (d + 1, hi))
    a.e("s_and_b32 s%d, s%d, 0xffff" % (d + 1, d + 1))
    a.e("s_mov_b32 s%d, 0x%x" % (d + 2, nbytes))
    a.e("s_mov_b32 s%d, 0x00020000" % (d + 3))


def kernel_header(a, name):
    a.raw(".globl %s" % name)
    a.raw(".p2align 8")
    a.raw(".type %s,@function" % name)
    a.label(name)


def kernel_desc(name, vgpr, sgpr=102):
    acc = (vgpr + 3) // 4 * 4
    return """.amdhsa_kernel %s
  .amdhsa_next_free_vgpr %d
  .amdhsa_next_free_sgpr %d
  .amdhsa_accum_offset %d
  .amdhsa_group_segment_fixed_size 0
  .amdhsa_kernarg_size 96
  .amdhsa_user_sgpr_count 2
  .amdhsa_user_sgpr_kernarg_segment_ptr 1
  .amdhsa_system_sgpr_workgroup_id_x 1
.end_amdhsa_kernel""" % (name, vgpr, sgpr, acc)


def round_bf16_pair(a, d0, d1, s0, s1, tmp):
    a.e("v_cvt_pk_bf16_f32 v%d, v%d, v%d" % (tmp, s0, s1))
    a.e("v_lshlrev_b32 v%d, 16, v%d" % (d0, tmp))
    a.e("v_and_b32 v%d, 0xffff0000, v%d" % (d1, tmp))


def tr_lane_off(a, dst, vL, t0, t1):
    a.e("v_and_b32 v%d, 16, v%d" % (dst, vL))
    a.e("v_lshlrev_b32 v%d, 1, v%d" % (dst, dst))
    a.e("v_and_b32 v%d, 1, v%d" % (t0, vL))
    a.e("v_lshlrev_b32 v%d, 4, v%d" % (t0, t0))
    a.e("v_and_b32 v%d, 2, v%d" % (t1, vL))
    a.e("v_lshlrev_b32 v%d, 2, v%d" % (t1, t1))
    a.e("v_add3_u32 v%d, v%d, v%d, v%d" % (dst, dst, t0, t1))


def gen_ln(a):
    name = "lnorm_kernel"
    kernel_header(a, name)
    NLN = 512
    NWG = NLN
    sX, sWS = 4, 6
    rX, rXN = 8, 12
    sT0, sT1, sW = 16, 17, 18
    a.e("s_cmp_ge_u32 s2, %d" % NWG)
    a.e("s_cbranch_scc1 L_ln_end")
    a.e("s_load_dwordx2 s[%d:%d], s[0:1], 0" % (sX, sX + 1))
    a.e("s_load_dwordx2 s[%d:%d], s[0:1], 88" % (sWS, sWS + 1))
    vLane, vT0, vT1, vOff, vSt, vSum, vMean, vR = 1, 2, 3, 4, 5, 6, 7, 8
    XP = 12
    XU = 16
    a.e("v_and_b32 v%d, 63, v0" % vLane)
    a.e("v_lshrrev_b32 v%d, 6, v0" % vT0)
    a.e("s_lshl_b32 s%d, s2, 2" % sT0)
    a.e("v_readfirstlane_b32 s%d, v%d" % (sW, vT0))
    a.e("s_waitcnt lgkmcnt(0)")
    make_srd(a, rX, sX, sX + 1, S * D * 2)
    make_srd(a, rXN, sWS, sWS + 1, XN_BYTES)
    a.e("s_add_u32 s%d, s%d, s%d" % (sT0, sT0, sW))
    a.e("s_lshl_b32 s%d, s%d, 10" % (sT1, sT0))
    a.e("v_lshlrev_b32 v%d, 4, v%d" % (vOff, vLane))
    a.e("buffer_load_dwordx4 %s, v%d, s[%d:%d], s%d offen" % (vr(XP, 4), vOff, rX, rX + 3, sT1))
    a.e("v_lshrrev_b32 v%d, 1, v%d" % (vT0, vLane))
    a.e("v_lshlrev_b32 v%d, 10, v%d" % (vT0, vT0))
    a.e("v_and_b32 v%d, 1, v%d" % (vT1, vLane))
    a.e("v_lshl_add_u32 v%d, v%d, 9, v%d" % (vSt, vT1, vT0))
    a.e("s_lshr_b32 s%d, s%d, 5" % (sT1, sT0))
    a.e("s_lshl_b32 s%d, s%d, 15" % (sT1, sT1))
    a.e("s_and_b32 s%d, s%d, 31" % (sT0, sT0))
    a.e("s_lshl_b32 s%d, s%d, 4" % (sT0, sT0))
    a.e("s_add_u32 s%d, s%d, s%d" % (sT1, sT1, sT0))
    a.e("v_add_u32 v%d, s%d, v%d" % (vSt, sT1, vSt))
    a.e("s_waitcnt vmcnt(0)")
    for i in range(4):
        a.e("v_lshlrev_b32 v%d, 16, v%d" % (XU + 2 * i, XP + i))
        a.e("v_and_b32 v%d, 0xffff0000, v%d" % (XU + 2 * i + 1, XP + i))

    def reduce(v):
        for msk in (1, 2, 4, 8, 16):
            a.e("ds_swizzle_b32 v%d, v%d offset:0x%x" % (vT0, v, (msk << 10) | 0x1f))
            a.e("s_waitcnt lgkmcnt(0)")
            a.e("v_add_f32 v%d, v%d, v%d" % (v, v, vT0))
        a.e("v_mov_b32 v%d, v%d" % (vT0, v))
        a.e("s_nop 1")
        a.e("v_permlane32_swap_b32 v%d, v%d" % (v, vT0))
        a.e("s_nop 1")
        a.e("v_add_f32 v%d, v%d, v%d" % (v, v, vT0))

    a.e("v_add_f32 v%d, v%d, v%d" % (vSum, XU, XU + 1))
    for i in range(2, 8):
        a.e("v_add_f32 v%d, v%d, v%d" % (vSum, vSum, XU + i))
    reduce(vSum)
    a.e("v_mul_f32 v%d, %s, v%d" % (vMean, f32(1.0 / D), vSum))
    a.e("v_mov_b32 v%d, 0" % vSum)
    for i in range(8):
        a.e("v_sub_f32 v%d, v%d, v%d" % (vT1, XU + i, vMean))
        a.e("v_fmac_f32 v%d, v%d, v%d" % (vSum, vT1, vT1))
    reduce(vSum)
    a.e("v_mul_f32 v%d, %s, v%d" % (vSum, f32(1.0 / D), vSum))
    round_bf16_pair(a, vMean, vSum, vMean, vSum, vT0)
    a.e("v_add_f32 v%d, %s, v%d" % (vSum, f32(1e-5), vSum))
    round_bf16_pair(a, vSum, vT1, vSum, vSum, vT0)
    a.e("v_sqrt_f32 v%d, v%d" % (vSum, vSum))
    a.e("s_nop 0")
    round_bf16_pair(a, vSum, vT1, vSum, vSum, vT0)
    a.e("v_rcp_f32 v%d, v%d" % (vR, vSum))
    for i in range(4):
        a.e("v_sub_f32 v%d, v%d, v%d" % (XU + 2 * i, XU + 2 * i, vMean))
        a.e("v_sub_f32 v%d, v%d, v%d" % (XU + 2 * i + 1, XU + 2 * i + 1, vMean))
        round_bf16_pair(a, XU + 2 * i, XU + 2 * i + 1, XU + 2 * i, XU + 2 * i + 1, vT0)
        a.e("v_mul_f32 v%d, v%d, v%d" % (XU + 2 * i, XU + 2 * i, vR))
        a.e("v_mul_f32 v%d, v%d, v%d" % (XU + 2 * i + 1, XU + 2 * i + 1, vR))
        a.e("v_cvt_pk_bf16_f32 v%d, v%d, v%d" % (XP + i, XU + 2 * i, XU + 2 * i + 1))
    a.e("buffer_store_dwordx4 %s, v%d, s[%d:%d], 0 offen" % (vr(XP, 4), vSt, rXN, rXN + 3))
    a.label("L_ln_end")
    a.e("s_endpgm")
    return name, (NWG, 256, 0), 32


def load_xn_frags(a, X, vL16, rXN, sBase, sTmp):
    for g in range(8):
        a.e("s_add_u32 s%d, s%d, %d" % (sTmp, sBase, g * 4096))
        for i in range(4):
            ks = 4 * g + i
            a.e("buffer_load_dwordx4 %s, v%d, s[%d:%d], s%d offen offset:%d" % (vr(X + 4 * ks, 4), vL16, rXN, rXN + 3, sTmp, i * 1024))


def gen_ffn1(a):
    name = "ffn1_kernel"
    kernel_header(a, name)
    NWG = 8 * 28
    sX, sWG, sWU, sWS = 4, 6, 8, 10
    rX, rWG, rWU, rXN, rH = 12, 16, 20, 24, 28
    sRB, sCB, sW, sT0, sT1, sT2 = 32, 33, 34, 35, 36, 37
    sK1, sK2, sXB, sHB = 38, 39, 40, 41
    a.e("s_cmp_ge_u32 s2, %d" % NWG)
    a.e("s_cbranch_scc1 L_ffn1_end")
    a.e("s_load_dwordx2 s[%d:%d], s[0:1], 0" % (sX, sX + 1))
    a.e("s_load_dwordx2 s[%d:%d], s[0:1], 48" % (sWG, sWG + 1))
    a.e("s_load_dwordx2 s[%d:%d], s[0:1], 56" % (sWU, sWU + 1))
    a.e("s_load_dwordx2 s[%d:%d], s[0:1], 88" % (sWS, sWS + 1))
    X = 0
    ACC = 128
    FR = 192
    vLane, vT0, vT1, vT2, vT3, vT4 = 232, 233, 234, 235, 236, 237
    vA = 238
    vXo, vDW, vSum, vSq, vMean, vRinv = 242, 243, 244, 245, 246, 247
    vHo = 248
    a.e("v_and_b32 v%d, 63, v0" % vLane)
    a.e("v_lshrrev_b32 v%d, 6, v0" % vT0)
    a.e("s_and_b32 s%d, s2, 7" % sRB)
    a.e("s_lshr_b32 s%d, s2, 3" % sCB)
    a.e("v_readfirstlane_b32 s%d, v%d" % (sW, vT0))
    a.e("s_waitcnt lgkmcnt(0)")
    make_srd(a, rX, sX, sX + 1, S * D * 2)
    make_srd(a, rWG, sWG, sWG + 1, D * DF * 2)
    make_srd(a, rWU, sWU, sWU + 1, D * DF * 2)
    make_srd(a, rXN, sWS, sWS + 1, XN_BYTES, WS_XN) if WS_XN else make_srd(a, rXN, sWS, sWS + 1, XN_BYTES)
    make_srd(a, rH, sWS, sWS + 1, H_BYTES, WS_H)
    a.e("v_lshrrev_b32 v%d, 3, v%d" % (vT0, vLane))
    a.e("s_movk_i32 s%d, 3584" % sT0)
    a.e("v_mul_lo_u32 v%d, v%d, s%d" % (vT0, vT0, sT0))
    a.e("v_lshrrev_b32 v%d, 2, v%d" % (vT1, vLane))
    a.e("v_and_b32 v%d, 4, v%d" % (vT1, vT1))
    a.e("v_and_b32 v%d, 7, v%d" % (vT2, vLane))
    a.e("v_xor_b32 v%d, v%d, v%d" % (vT1, vT1, vT2))
    a.e("v_lshl_add_u32 v%d, v%d, 4, v%d" % (vDW, vT1, vT0))
    a.e("v_lshlrev_b32 v%d, 4, v%d" % (vXo, vLane))
    a.e("s_lshl_b32 s%d, s%d, 3" % (sK2, sRB))
    a.e("s_add_u32 s%d, s%d, s%d" % (sK2, sK2, sW))
    a.e("s_lshl_b32 s%d, s%d, 15" % (sXB, sK2))
    a.e("s_mul_i32 s%d, s%d, %d" % (sT0, sW, 16 * 3584))
    a.e("s_lshl_b32 s%d, s%d, 7" % (sT1, sCB))
    a.e("s_add_u32 s%d, s%d, s%d" % (sT0, sT0, sT1))
    a.e("s_lshl_b32 s%d, s%d, 11" % (sT1, sW))
    for q in range(4):
        for i in range(2):
            a.e("s_add_u32 s%d, s%d, %d" % (sT2, sT0, (128 * q + 8 * i) * 3584))
            a.e("s_add_u32 m0, s%d, %d" % (sT1, q * 16384 + i * 1024))
            a.e("s_nop 0")
            a.e("buffer_load_dwordx4 v%d, s[%d:%d], s%d offen lds" % (vDW, rWG, rWG + 3, sT2))
            a.e("s_add_u32 m0, s%d, %d" % (sT1, 65536 + q * 16384 + i * 1024))
            a.e("s_nop 0")
            a.e("buffer_load_dwordx4 v%d, s[%d:%d], s%d offen lds" % (vDW, rWU, rWU + 3, sT2))
        for g in range(2):
            a.e("s_add_u32 s%d, s%d, %d" % (sT2, sXB, (2 * q + g) * 4096))
            for i in range(4):
                ks = 8 * q + 4 * g + i
                a.e("buffer_load_dwordx4 %s, v%d, s[%d:%d], s%d offen offset:%d" % (vr(X + 4 * ks, 4), vXo, rXN, rXN + 3, sT2, i * 1024))
    a.e("s_mul_i32 s%d, s%d, %d" % (sHB, sK2, 112 * 1024))
    a.e("s_lshl_b32 s%d, s%d, 12" % (sT2, sCB))
    a.e("s_add_u32 s%d, s%d, s%d" % (sHB, sHB, sT2))
    tr_lane_off(a, vT2, vLane, vT0, vT1)
    a.e("v_lshrrev_b32 v%d, 5, v%d" % (vT0, vLane))
    a.e("v_lshlrev_b32 v%d, 3, v%d" % (vT0, vT0))
    a.e("v_bfe_u32 v%d, v%d, 2, 2" % (vT1, vLane))
    a.e("v_add_u32 v%d, v%d, v%d" % (vT0, vT0, vT1))
    a.e("v_lshl_add_u32 v%d, v%d, 7, v%d" % (vT2, vT0, vT2))
    a.e("v_lshrrev_b32 v%d, 1, v%d" % (vT1, vT1))
    a.e("v_lshlrev_b32 v%d, 6, v%d" % (vT1, vT1))
    a.e("v_add_u32 v%d, v%d, v%d" % (vA + 0, vT2, vT1))
    a.e("v_xor_b32 v%d, 64, v%d" % (vT1, vT1))
    a.e("v_add_u32 v%d, v%d, v%d" % (vA + 1, vT2, vT1))
    a.e("v_add_u32 v%d, 0x10000, v%d" % (vA + 2, vA + 0))
    a.e("v_add_u32 v%d, 0x10000, v%d" % (vA + 3, vA + 1))
    NFR = 10
    PD = 6

    def frag(n):
        return FR + 4 * (n % NFR)

    for qt in range(4):
        a.e("s_waitcnt vmcnt(%d)" % (12 * (3 - qt)))
        a.e("s_barrier")
        seq = [(ks, q) for ks in range(8 * qt, 8 * qt + 8) for q in range(4)]

        def issue(n):
            ks, q = seq[n]
            for t in range(2):
                a.lds("ds_read_b64_tr_b16 %s, v%d offset:%d" % (vr(frag(n) + 2 * t, 2), vA + q, (16 * ks + 4 * t) * 128), n)

        for n in range(PD):
            issue(n)
        for n in range(len(seq)):
            if n + PD < len(seq):
                issue(n + PD)
            ks, q = seq[n]
            a.wait_lds(n)
            acc = ACC + 16 * q
            a.e("v_mfma_f32_32x32x16_bf16 %s, %s, %s, %s" % (vr(acc, 16), vr(frag(n), 4), vr(X + 4 * ks, 4), "0" if ks == 0 else vr(acc, 16)))
    a.e("s_nop 15")
    a.e("s_nop 3")
    KK = -2.0 * math.sqrt(2.0 / math.pi) * math.log2(math.e)
    a.e("s_mov_b32 s%d, %s" % (sK1, f32(KK * 0.044715)))
    a.e("v_mov_b32 v%d, %s" % (vT4, f32(KK)))
    for cs in range(2):
        G = ACC + 16 * cs
        U = ACC + 32 + 16 * cs
        for p in range(8):
            g0, g1, u0, u1 = G + 2 * p, G + 2 * p + 1, U + 2 * p, U + 2 * p + 1
            round_bf16_pair(a, g0, g1, g0, g1, vT0)
            round_bf16_pair(a, u0, u1, u0, u1, vT0)
            for g, t in ((g0, vT0), (g1, vT1)):
                a.e("v_mul_f32 v%d, v%d, v%d" % (t, g, g))
                a.e("v_fma_f32 v%d, v%d, s%d, v%d" % (t, t, sK1, vT4))
                a.e("v_mul_f32 v%d, v%d, v%d" % (t, t, g))
            a.e("v_exp_f32 v%d, v%d" % (vT0, vT0))
            a.e("v_exp_f32 v%d, v%d" % (vT1, vT1))
            a.e("s_nop 0")
            a.e("v_add_f32 v%d, 1.0, v%d" % (vT0, vT0))
            a.e("v_add_f32 v%d, 1.0, v%d" % (vT1, vT1))
            a.e("v_rcp_f32 v%d, v%d" % (vT0, vT0))
            a.e("v_rcp_f32 v%d, v%d" % (vT1, vT1))
            a.e("s_nop 0")
            a.e("v_mul_f32 v%d, v%d, v%d" % (g0, g0, vT0))
            a.e("v_mul_f32 v%d, v%d, v%d" % (g1, g1, vT1))
            round_bf16_pair(a, g0, g1, g0, g1, vT0)
            a.e("v_mul_f32 v%d, v%d, v%d" % (g0, g0, u0))
            a.e("v_mul_f32 v%d, v%d, v%d" % (g1, g1, u1))
            a.e("v_cvt_pk_bf16_f32 v%d, v%d, v%d" % (G + p, g0, g1))
        a.e("buffer_store_dwordx4 %s, v%d, s[%d:%d], s%d offen offset:%d" % (vr(G, 4), vXo, rH, rH + 3, sHB, cs * 2048))
        a.e("buffer_store_dwordx4 %s, v%d, s[%d:%d], s%d offen offset:%d" % (vr(G + 4, 4), vXo, rH, rH + 3, sHB, cs * 2048 + 1024))
    a.label("L_ffn1_end")
    a.e("s_endpgm")
    return name, (NWG, 512, 131072), 256


def gen_attn(a):
    name = "attn_kernel"
    kernel_header(a, name)
    NWG = 256
    sK, sV, sWQ, sWS = 4, 6, 8, 10
    rK, rV, rWQ, rXN, rO = 12, 16, 20, 24, 28
    sHead, sQB, sW, sT0, sT1, sT2 = 32, 33, 34, 35, 36, 37
    sC, sJ, sKoff, sVoff, sM0K, sM0V = 38, 39, 40, 41, 42, 43
    sRBk, sXB, sOB, sT3 = 44, 45, 46, 47
    sGB, sGL, sWB, sHB = 84, 85, 86, 87
    a.e("s_cmp_ge_u32 s2, %d" % NWG)
    a.e("s_cbranch_scc1 L_attn_end")
    a.e("s_load_dwordx2 s[%d:%d], s[0:1], 8" % (sK, sK + 1))
    a.e("s_load_dwordx2 s[%d:%d], s[0:1], 16" % (sV, sV + 1))
    a.e("s_load_dwordx2 s[%d:%d], s[0:1], 24" % (sWQ, sWQ + 1))
    a.e("s_load_dwordx2 s[%d:%d], s[0:1], 88" % (sWS, sWS + 1))
    rWG, rWU, rH = 48, 52, 56
    a.e("s_load_dwordx4 s[%d:%d], s[0:1], 48" % (rWG, rWG + 3))
    rPW, rPF = 92, 96
    a.e("s_load_dwordx2 s[%d:%d], s[0:1], 32" % (rPW, rPW + 1))
    a.e("s_load_dwordx2 s[%d:%d], s[0:1], 64" % (rPW + 2, rPW + 3))
    O = 0
    SB = [64, 96]
    Q = 128
    FR = 160
    NFR = P('A_NFR', 8)
    X = 0
    QACC = 160
    PFR = 192
    vKa = 224
    vVa = 232
    vDK0, vDK1, vDV = 236, 237, 238
    vM, vM8, vL0, vL1 = 239, 240, 241, 242
    vT0, vT1, vT2, vT3, vT4 = 243, 244, 245, 246, 247
    vLane, vOo = 248, 249
    vWa = 250
    vDW = 254
    LDS_K = 98304
    LDS_V = 0
    a.e("v_and_b32 v%d, 63, v0" % vLane)
    a.e("v_lshrrev_b32 v%d, 6, v0" % vT0)
    a.e("s_lshr_b32 s%d, s2, 6" % sHead)
    a.e("s_lshl_b32 s%d, s%d, 3" % (sHead, sHead))
    a.e("s_and_b32 s%d, s2, 7" % sT0)
    a.e("s_or_b32 s%d, s%d, s%d" % (sHead, sHead, sT0))
    a.e("s_bfe_u32 s%d, s2, 0x30003" % sQB)
    a.e("v_readfirstlane_b32 s%d, v%d" % (sW, vT0))
    a.e("s_waitcnt lgkmcnt(0)")
    a.e("s_lshl_b32 s%d, s%d, 19" % (sT0, sHead))
    make_srd_s(a, rK, sK, sK + 1, S * DH * 2, sT0)
    make_srd_s(a, rV, sV, sV + 1, S * DH * 2, sT0)
    make_srd(a, rWQ, sWQ, sWQ + 1, D * H * DH * 2)
    make_srd(a, rXN, sWS, sWS + 1, XN_BYTES)
    make_srd(a, rO, sWS, sWS + 1, O_BYTES, WS_O)
    make_srd(a, rWU, rWG + 2, rWG + 3, D * DF * 2)
    make_srd(a, rWG, rWG, rWG + 1, D * DF * 2)
    make_srd(a, rH, sWS, sWS + 1, H_BYTES, WS_H)
    a.e("s_cmp_lt_u32 s%d, 28" % sHead)
    a.e("s_cselect_b32 s%d, s%d, 0" % (rH + 2, rH + 2))
    STAMP = P('A_STAMP', 0)
    stamp_n = [0]
    def stamp():
        if not STAMP:
            return
        a.e("s_memtime s[%d:%d]" % (60 + 2 * stamp_n[0], 61 + 2 * stamp_n[0]))
        stamp_n[0] += 1
    stamp()
    a.e("v_lshrrev_b32 v%d, 4, v%d" % (vT0, vLane))
    a.e("v_and_b32 v%d, 15, v%d" % (vT1, vLane))
    a.e("v_lshlrev_b32 v%d, 2, v%d" % (vT2, vT0))
    a.e("v_xor_b32 v%d, v%d, v%d" % (vT2, vT2, vT1))
    a.e("v_lshlrev_b32 v%d, 4, v%d" % (vT2, vT2))
    a.e("v_lshl_add_u32 v%d, v%d, 8, v%d" % (vDV, vT0, vT2))
    a.e("v_lshl_add_u32 v%d, v%d, 13, v%d" % (vDW, vT0, vT2))
    a.e("s_and_b32 s%d, s%d, 1" % (sT0, sW))
    a.e("s_lshl_b32 s%d, s%d, 3" % (sT0, sT0))
    a.e("v_add_u32 v%d, s%d, v%d" % (vT2, sT0, vT0))
    a.e("v_xor_b32 v%d, v%d, v%d" % (vT3, vT2, vT1))
    a.e("v_lshlrev_b32 v%d, 4, v%d" % (vT3, vT3))
    a.e("v_lshl_add_u32 v%d, v%d, 8, v%d" % (vDK0, vT0, vT3))
    a.e("v_add_u32 v%d, 4, v%d" % (vT2, vT2))
    a.e("v_xor_b32 v%d, v%d, v%d" % (vT3, vT2, vT1))
    a.e("v_lshlrev_b32 v%d, 4, v%d" % (vT3, vT3))
    a.e("v_lshl_add_u32 v%d, v%d, 8, v%d" % (vDK1, vT0, vT3))
    a.e("s_lshl_b32 s%d, s%d, 11" % (sT1, sW))
    a.e("s_add_u32 s%d, s%d, %d" % (sM0K, sT1, LDS_K))
    a.e("s_add_u32 s%d, s%d, %d" % (sM0V, sT1, LDS_V))

    def dma_k(slot, soff):
        a.e("s_add_u32 m0, s%d, %d" % (sM0K, slot * 16384))
        a.e("s_nop 0")
        a.e("buffer_load_dwordx4 v%d, s[%d:%d], s%d offen lds" % (vDK0, rK, rK + 3, soff))
        a.e("buffer_load_dwordx4 v%d, s[%d:%d], s%d offen offset:1024 lds" % (vDK1, rK, rK + 3, soff))

    def dma_v(slot, soff):
        a.e("s_add_u32 m0, s%d, %d" % (sM0V, slot * 16384))
        a.e("s_nop 0")
        a.e("buffer_load_dwordx4 v%d, s[%d:%d], s%d offen lds" % (vDV, rV, rV + 3, soff))
        a.e("buffer_load_dwordx4 v%d, s[%d:%d], s%d offen offset:1024 lds" % (vDV, rV, rV + 3, soff))

    vDG = 239
    vFa = 224
    a.e("v_lshrrev_b32 v%d, 3, v%d" % (vT0, vLane))
    a.e("s_movk_i32 s%d, 3584" % sT0)
    a.e("v_mul_lo_u32 v%d, v%d, s%d" % (vT0, vT0, sT0))
    a.e("v_lshrrev_b32 v%d, 2, v%d" % (vT2, vLane))
    a.e("v_and_b32 v%d, 4, v%d" % (vT2, vT2))
    a.e("v_and_b32 v%d, 7, v%d" % (vT3, vLane))
    a.e("v_xor_b32 v%d, v%d, v%d" % (vT2, vT2, vT3))
    a.e("v_lshl_add_u32 v%d, v%d, 4, v%d" % (vDG, vT2, vT0))
    a.e("s_lshl_b32 s%d, s%d, 3" % (sRBk, sQB))
    a.e("s_add_u32 s%d, s%d, s%d" % (sRBk, sRBk, sW))
    a.e("s_lshl_b32 s%d, s%d, 15" % (sXB, sRBk))
    a.e("v_lshlrev_b32 v%d, 4, v%d" % (vOo, vLane))
    a.e("s_mul_i32 s%d, s%d, %d" % (sGB, sW, 16 * 3584))
    a.e("s_lshl_b32 s%d, s%d, 7" % (sT2, sHead))
    a.e("s_add_u32 s%d, s%d, s%d" % (sGB, sGB, sT2))
    a.e("s_lshl_b32 s%d, s%d, 11" % (sGL, sW))
    a.e("s_lshl_b32 s%d, s%d, 17" % (sWB, sW))
    a.e("s_lshl_b32 s%d, s%d, 8" % (sT2, sHead))
    a.e("s_add_u32 s%d, s%d, s%d" % (sWB, sWB, sT2))
    a.e("s_lshl_b32 s%d, s%d, 12" % (sT3, sW))

    def gu_pieces(q):
        ps = []
        for i in range(2):
            for mat, rr in ((0, rWG), (1, rWU)):
                ps.append(["s_add_u32 s%d, s%d, %d" % (sT2, sGB, (128 * q + 8 * i) * 3584),
                           "s_add_u32 m0, s%d, %d" % (sGL, q * 32768 + mat * 16384 + i * 1024),
                           "s_nop 0",
                           "buffer_load_dwordx4 v%d, s[%d:%d], s%d offen lds" % (vDG, rr, rr + 3, sT2)])
        return [(p, ("gu", q)) for p in ps]

    def wq_pieces(q):
        ps = []
        for i in range(4):
            ps.append(["s_add_u32 s%d, s%d, %d" % (sT2, sWB, (128 * q + 4 * i) * 8192),
                       "s_add_u32 m0, s%d, %d" % (sT3, q * 32768 + i * 1024),
                       "s_nop 0",
                       "buffer_load_dwordx4 v%d, s[%d:%d], s%d offen lds" % (vDW, rWQ, rWQ + 3, sT2)])
        return [(p, ("wq", q)) for p in ps]

    def x_pieces(q):
        ps = []
        for ks in range(8 * q, 8 * q + 8):
            ps.append(["s_add_u32 s%d, s%d, %d" % (sT2, sXB, (ks >> 2) * 4096),
                       "buffer_load_dwordx4 %s, v%d, s[%d:%d], s%d offen offset:%d" % (vr(X + 4 * ks, 4), vOo, rXN, rXN + 3, sT2, (ks & 3) * 1024)])
        return [(p, ("x", q)) for p in ps]

    def kv_pieces(is_k, slot, tile):
        m0b = sM0K if is_k else sM0V
        rr = rK if is_k else rV
        v0, v1 = (vDK0, vDK1) if is_k else (vDV, vDV)
        return [(["s_add_u32 s%d, s%d, %d" % (sT2, sT1, tile * 16384), "s_add_u32 m0, s%d, %d" % (m0b, slot * 16384), "s_nop 0",
                  "buffer_load_dwordx4 v%d, s[%d:%d], s%d offen lds" % (v0, rr, rr + 3, sT2)], ("kv",)),
                (["buffer_load_dwordx4 v%d, s[%d:%d], s%d offen offset:1024 lds" % (v1, rr, rr + 3, sT2)], ("kv",))]

    def emit_piece(pc):
        ins, tag = pc
        for t in ins[:-1]:
            a.e(t)
        a.vm(ins[-1], tag)

    sU, sKS = sT0, sJ
    a.e("s_lshl_b32 s%d, s2, 3" % sU)
    a.e("s_add_u32 s%d, s%d, s%d" % (sU, sU, sW))
    a.e("s_lshr_b32 s%d, s%d, 2" % (sKS, sU))
    make_srd(a, rPF, sWS, sWS + 1, W_BYTES, WS_W)
    a.e("s_cmp_lt_u32 s%d, 1472" % sU)
    a.e("s_cselect_b32 s%d, s%d, 0" % (rPF + 2, rPF + 2))
    a.e("s_cselect_b32 s%d, 0x%x, 0" % (sT2, DF * D * 2))
    a.e("s_cmp_lt_u32 s%d, 256" % sKS)
    a.e("s_cselect_b32 s%d, s%d, s%d" % (rPW, rPW, rPW + 2))
    a.e("s_cselect_b32 s%d, s%d, s%d" % (rPW + 1, rPW + 1, rPW + 3))
    a.e("s_cselect_b32 s%d, 0x%x, s%d" % (rPW + 2, H * DH * D * 2, sT2))
    a.e("s_cselect_b32 s%d, 0, 256" % sT2)
    a.e("s_and_b32 s%d, s%d, 0xffff" % (rPW + 1, rPW + 1))
    a.e("s_mov_b32 s%d, 0x00020000" % (rPW + 3))
    a.e("s_sub_u32 s%d, s%d, s%d" % (sT2, sKS, sT2))
    a.e("s_lshl_b32 s%d, s%d, 14" % (sT2, sT2))
    a.e("s_and_b32 s%d, s%d, 3" % (sU, sU))
    a.e("s_lshl_b32 s%d, s%d, 8" % (sC, sU))
    a.e("s_add_u32 s%d, s%d, s%d" % (sT2, sT2, sC))
    WL, WT, pO, pO2, pD = 208, 250, 240, 255, 239
    sPS, sPD, sPL, sPH = 100, 101, 90, 91
    a.e("s_mov_b32 s%d, s%d" % (sPS, sT2))
    a.e("s_mul_i32 s%d, s%d, %d" % (sU, sU, 4 * 368 * 1024))
    a.e("s_lshl_b32 s%d, s%d, 10" % (sKS, sKS))
    a.e("s_add_u32 s%d, s%d, s%d" % (sPD, sKS, sU))
    a.e("s_mov_b32 s%d, 0x05040100" % sPL)
    a.e("s_mov_b32 s%d, 0x07060302" % sPH)

    def wprep_issue():
        a.e("v_lshrrev_b32 v%d, 4, v%d" % (vT0, vLane))
        a.e("v_and_b32 v%d, 7, v%d" % (vT1, vLane))
        a.e("v_lshlrev_b32 v%d, 6, v%d" % (pO, vT0))
        a.e("v_lshl_add_u32 v%d, v%d, 3, v%d" % (pO, vT1, pO))
        a.e("v_bfe_u32 v%d, v%d, 3, 1" % (vT2, vLane))
        a.e("v_lshl_add_u32 v%d, v%d, 13, v%d" % (pO, vT2, pO))
        a.e("v_add_u32 v%d, 0x1000, v%d" % (pO2, pO))
        for j in range(8):
            a.e("buffer_load_dwordx2 %s, v%d, s[%d:%d], s%d offen offset:%d" % (vr(WL + 2 * j, 2), pO if j < 4 else pO2, rPW, rPW + 3, sPS, (j & 3) * 1024))
        a.e("s_mov_b32 s%d, %d" % (sT2, 368 * 1024))
        a.e("v_mul_lo_u32 v%d, v%d, s%d" % (pD, vT0, sT2))
        a.e("v_and_b32 v%d, 4, v%d" % (vT3, vT1))
        a.e("v_and_b32 v%d, 1, v%d" % (vT4, vT1))
        a.e("v_lshl_add_u32 v%d, v%d, 1, v%d" % (vT3, vT4, vT3))
        a.e("v_bfe_u32 v%d, v%d, 1, 1" % (vT4, vT1))
        a.e("v_add_u32 v%d, v%d, v%d" % (vT3, vT3, vT4))
        a.e("v_lshl_add_u32 v%d, v%d, 6, v%d" % (pD, vT3, pD))
        a.e("v_lshl_add_u32 v%d, v%d, 9, v%d" % (pD, vT2, pD))

    def wprep_finish():
        for b in range(4):
            for r in range(4):
                lo, hi = WL + 2 * (2 * r) + (b >> 1), WL + 2 * (2 * r + 1) + (b >> 1)
                a.e("v_perm_b32 v%d, v%d, v%d, s%d" % (WT + r, hi, lo, sPL if (b & 1) == 0 else sPH))
            a.e("buffer_store_dwordx4 %s, v%d, s[%d:%d], s%d offen offset:%d" % (vr(WT, 4), pD, rPF, rPF + 3, sPD, 16 * b))
            a.e("s_nop 2")

    for q in range(2):
        for pc in gu_pieces(q) + x_pieces(q):
            emit_piece(pc)
    a.e("s_add_u32 s%d, s%d, %d" % (sKoff, sT1, 2 * 16384))
    a.e("s_add_u32 s%d, s%d, %d" % (sVoff, sT1, 2 * 16384))
    a.e("s_lshl_b32 s%d, s%d, 18" % (sOB, sRBk))
    a.e("s_lshl_b32 s%d, s%d, 13" % (sT2, sHead))
    a.e("s_add_u32 s%d, s%d, s%d" % (sOB, sOB, sT2))
    a.e("s_mul_i32 s%d, s%d, %d" % (sHB, sRBk, 112 * 1024))
    a.e("s_lshl_b32 s%d, s%d, 12" % (sT2, sHead))
    a.e("s_add_u32 s%d, s%d, s%d" % (sHB, sHB, sT2))
    tr_lane_off(a, vT2, vLane, vT0, vT1)
    a.e("v_bfe_u32 v%d, v%d, 2, 2" % (vT1, vLane))
    a.e("v_lshrrev_b32 v%d, 5, v%d" % (vT0, vLane))
    a.e("v_lshl_add_u32 v%d, v%d, 3, v%d" % (vT3, vT0, vT1))
    a.e("v_lshl_add_u32 v%d, v%d, 7, v%d" % (vT4, vT3, vT2))
    a.e("v_lshrrev_b32 v%d, 1, v%d" % (vFa + 3, vT1))
    a.e("v_lshlrev_b32 v%d, 6, v%d" % (vFa + 3, vFa + 3))
    a.e("v_add_u32 v%d, v%d, v%d" % (vFa + 0, vT4, vFa + 3))
    a.e("v_xor_b32 v%d, 64, v%d" % (vFa + 3, vFa + 3))
    a.e("v_add_u32 v%d, v%d, v%d" % (vFa + 1, vT4, vFa + 3))
    a.e("v_add_u32 v%d, 0x4000, v%d" % (vFa + 2, vFa + 0))
    a.e("v_add_u32 v%d, 0x4000, v%d" % (vFa + 3, vFa + 1))
    a.e("v_lshl_add_u32 v%d, v%d, 8, v%d" % (vT3, vT3, vT2))
    a.e("v_lshl_add_u32 v%d, v%d, 2, v%d" % (vT4, vT0, vT1))
    a.e("v_lshl_add_u32 v%d, v%d, 8, v%d" % (vT4, vT4, vT2))
    for db in range(4):
        a.e("v_xor_b32 v%d, %d, v%d" % (vT2, db, vT1))
        a.e("v_lshlrev_b32 v%d, 6, v%d" % (vT2, vT2))
        a.e("v_add_u32 v%d, v%d, v%d" % (vWa + db, vT3, vT2))
        a.e("v_add_u32 v%d, v%d, v%d" % (vVa + db, vT4, vT2))
    a.e("s_mov_b32 s%d, %s" % (sC, f32(math.log2(math.e) / math.sqrt(DH))))
    stamp()
    ACC4 = 160
    PFR = 128
    NP = 8
    PDQ = 5
    pctr = [0]

    def gemm_quarter(qt, addr, rowbytes, pieces=()):
        seq = [(ks, b) for ks in range(8 * qt, 8 * qt + 8) for b in range(4)]
        base = pctr[0]

        def pfrag(n):
            return PFR + 4 * ((base + n) % NP)

        def pissue(n):
            ks, b = seq[n]
            for t in range(2):
                off = (qt * 32768 + (16 * (ks - 8 * qt) + 4 * t) * rowbytes) & 0xffff
                a.lds("ds_read_b64_tr_b16 %s, v%d offset:%d" % (vr(pfrag(n) + 2 * t, 2), addr + b, off), ("q", base + n))

        for n in range(PDQ):
            pissue(n)
        for n in range(len(seq)):
            if n + PDQ < len(seq):
                pissue(n + PDQ)
            ks, b = seq[n]
            a.wait_lds(("q", base + n))
            acc = ACC4 + 16 * b
            a.e("v_mfma_f32_32x32x16_bf16 %s, %s, %s, %s" % (vr(acc, 16), vr(pfrag(n), 4), vr(X + 4 * ks, 4), "0" if ks == 0 else vr(acc, 16)))
            if n % 2 == 0 and n // 2 < len(pieces):
                emit_piece(pieces[n // 2])
        assert len(pieces) <= 16
        pctr[0] += len(seq)

    fp = [gu_pieces(2) + x_pieces(2), gu_pieces(3) + x_pieces(3) + wq_pieces(0), wq_pieces(1) + kv_pieces(True, 2, 0) + kv_pieces(True, 3, 1), wq_pieces(2)]
    for qt in range(4):
        a.wait_vm(("x", qt))
        a.e("s_barrier")
        if qt == 2:
            for b in range(4):
                a.e("v_add_u32 v%d, 0x10000, v%d" % (vFa + b, vFa + b))
        gemm_quarter(qt, vFa, 128, fp[qt])
    a.e("s_nop 15")
    a.e("s_nop 3")
    KK = -2.0 * math.sqrt(2.0 / math.pi) * math.log2(math.e)
    a.e("s_mov_b32 s%d, %s" % (sT2, f32(KK * 0.044715)))
    a.e("v_mov_b32 v%d, %s" % (vT4, f32(KK)))
    for cs in range(2):
        G = ACC4 + 16 * cs
        U = ACC4 + 32 + 16 * cs
        for p in range(8):
            g0, g1, u0, u1 = G + 2 * p, G + 2 * p + 1, U + 2 * p, U + 2 * p + 1
            round_bf16_pair(a, g0, g1, g0, g1, vT0)
            round_bf16_pair(a, u0, u1, u0, u1, vT0)
            for g, t in ((g0, vT0), (g1, vT1)):
                a.e("v_mul_f32 v%d, v%d, v%d" % (t, g, g))
                a.e("v_fma_f32 v%d, v%d, s%d, v%d" % (t, t, sT2, vT4))
                a.e("v_mul_f32 v%d, v%d, v%d" % (t, t, g))
            a.e("v_exp_f32 v%d, v%d" % (vT0, vT0))
            a.e("v_exp_f32 v%d, v%d" % (vT1, vT1))
            a.e("s_nop 0")
            a.e("v_add_f32 v%d, 1.0, v%d" % (vT0, vT0))
            a.e("v_add_f32 v%d, 1.0, v%d" % (vT1, vT1))
            a.e("v_rcp_f32 v%d, v%d" % (vT0, vT0))
            a.e("v_rcp_f32 v%d, v%d" % (vT1, vT1))
            a.e("s_nop 0")
            a.e("v_mul_f32 v%d, v%d, v%d" % (g0, g0, vT0))
            a.e("v_mul_f32 v%d, v%d, v%d" % (g1, g1, vT1))
            round_bf16_pair(a, g0, g1, g0, g1, vT0)
            a.e("v_mul_f32 v%d, v%d, v%d" % (g0, g0, u0))
            a.e("v_mul_f32 v%d, v%d, v%d" % (g1, g1, u1))
            a.e("v_cvt_pk_bf16_f32 v%d, v%d, v%d" % (G + p, g0, g1))
        a.vm("buffer_store_dwordx4 %s, v%d, s[%d:%d], s%d offen offset:%d" % (vr(G, 4), vOo, rH, rH + 3, sHB, cs * 2048), ("st",))
        a.vm("buffer_store_dwordx4 %s, v%d, s[%d:%d], s%d offen offset:%d" % (vr(G + 4, 4), vOo, rH, rH + 3, sHB, cs * 2048 + 1024), ("st",))
    stamp()
    qp = [wq_pieces(3), kv_pieces(False, 0, 0) + kv_pieces(False, 1, 1), [], []]
    for qt in range(4):
        a.wait_vm(("wq", qt))
        a.e("s_barrier")
        if qt == 2:
            for db in range(4):
                a.e("v_add_u32 v%d, 0x10000, v%d" % (vWa + db, vWa + db))
        gemm_quarter(qt, vWa, 256, qp[qt])
    a.e("s_nop 15")
    a.e("s_nop 3")
    for db in range(4):
        for p in range(8):
            a.e("v_mul_f32 v%d, s%d, v%d" % (ACC4 + 16 * db + 2 * p, sC, ACC4 + 16 * db + 2 * p))
            a.e("v_mul_f32 v%d, s%d, v%d" % (ACC4 + 16 * db + 2 * p + 1, sC, ACC4 + 16 * db + 2 * p + 1))
            a.e("v_cvt_pk_bf16_f32 v%d, v%d, v%d" % (Q + 8 * db + p, ACC4 + 16 * db + 2 * p, ACC4 + 16 * db + 2 * p + 1))
    a.e("v_lshrrev_b32 v%d, 5, v%d" % (vT0, vLane))
    a.e("v_and_b32 v%d, 31, v%d" % (vT1, vLane))
    a.e("v_and_b32 v%d, 15, v%d" % (vT2, vLane))
    a.e("v_xor_b32 v%d, v%d, v%d" % (vT2, vT2, vT0))
    a.e("v_lshlrev_b32 v%d, 8, v%d" % (vT1, vT1))
    a.e("v_add_u32 v%d, 0x%x, v%d" % (vT1, LDS_K, vT1))
    for ks in range(8):
        a.e("v_xor_b32 v%d, %d, v%d" % (vT3, 2 * ks, vT2))
        a.e("v_lshl_add_u32 v%d, v%d, 4, v%d" % (vKa + ks, vT3, vT1))
    a.e("s_waitcnt vmcnt(0)")
    a.e("s_barrier")
    dma_k(0, sKoff)
    a.e("s_add_u32 s%d, s%d, 16384" % (sKoff, sKoff))
    a.e("s_add_u32 m0, s%d, %d" % (sM0K, 1 * 16384))
    a.e("s_nop 0")
    a.e("buffer_load_dwordx4 v%d, s[%d:%d], s%d offen lds" % (vDK0, rK, rK + 3, sKoff))
    wprep_issue()
    for i in range(64):
        a.e("v_mov_b32 v%d, 0" % (O + i))
    NEGM = 192
    for i in range(16):
        a.e("v_mov_b32 v%d, 0" % (NEGM + i))
    a.e("v_mov_b32 v%d, 0" % vL0)
    a.e("v_mov_b32 v%d, 0" % vL1)

    fr_ctr = [0]

    def kread(kslot, m):
        kb, ks = m >> 3, m & 7
        f = FR + 4 * (fr_ctr[0] % NFR)
        tag = ("f", fr_ctr[0])
        fr_ctr[0] += 1
        a.lds("ds_read_b128 %s, v%d offset:%d" % (vr(f, 4), vKa + ks, kslot * 16384 + kb * 8192), tag)
        return (f, tag)

    def vread(vslot, m):
        s_, db = m >> 2, m & 3
        f = FR + 4 * (fr_ctr[0] % NFR)
        tag = ("f", fr_ctr[0])
        fr_ctr[0] += 1
        for t in range(2):
            a.lds("ds_read_b64_tr_b16 %s, v%d offset:%d" % (vr(f + 2 * t, 2), vVa + db, vslot * 16384 + (16 * s_ + 8 * t) * 256), tag)
        return (f, tag)

    def softmax_ops(cur):
        ops = []
        for g in range(8):
            b = cur + 4 * g
            for i in range(4):
                ops.append("v_exp_f32 v%d, v%d" % (b + i, b + i))
            for i in range(4):
                l = vL0 if i % 2 == 0 else vL1
                ops.append("v_add_f32 v%d, v%d, v%d" % (l, l, b + i))
            ops.append("v_cvt_pk_bf16_f32 v%d, v%d, v%d" % (cur + 2 * g, b, b + 1))
            ops.append("v_cvt_pk_bf16_f32 v%d, v%d, v%d" % (cur + 2 * g + 1, b + 2, b + 3))
        return ops

    def max_ops(nxt):
        ops = []
        ops.append("v_max3_f32 v%d, v%d, v%d, v%d" % (vT0, nxt + 0, nxt + 1, nxt + 2))
        ops.append("v_max3_f32 v%d, v%d, v%d, v%d" % (vT1, nxt + 16, nxt + 17, nxt + 18))
        for i in range(3, 15, 2):
            ops.append("v_max3_f32 v%d, v%d, v%d, v%d" % (vT0, vT0, nxt + i, nxt + i + 1))
            ops.append("v_max3_f32 v%d, v%d, v%d, v%d" % (vT1, vT1, nxt + 16 + i, nxt + 16 + i + 1))
        ops.append("v_max3_f32 v%d, v%d, v%d, v%d" % (vT0, vT0, nxt + 15, nxt + 31))
        ops.append("v_max_f32 v%d, v%d, v%d" % (vT0, vT0, vT1))
        ops.append("v_mov_b32 v%d, v%d" % (vT1, vT0))
        ops.append("s_nop 1")
        ops.append("v_permlane32_swap_b32 v%d, v%d" % (vT0, vT1))
        ops.append("s_nop 1")
        ops.append("v_max_f32 v%d, v%d, v%d" % (vT0, vT0, vT1))
        return ops

    rescale_sites = []

    def rescale_body(buf, first):
        if not first:
            a.e("v_max_f32 v%d, 0, v%d" % (vT0, vT0))
        a.e("v_sub_f32 v%d, 0, v%d" % (vT2, vT0))
        a.e("v_exp_f32 v%d, v%d" % (vT2, vT2))
        a.e("v_sub_f32 v%d, v%d, v%d" % (NEGM, NEGM, vT0))
        for i in range(1, 16):
            a.e("v_mov_b32 v%d, v%d" % (NEGM + i, NEGM))
        for i in range(32):
            a.e("v_sub_f32 v%d, v%d, v%d" % (buf + i, buf + i, vT0))
        if not first:
            for i in range(64):
                a.e("v_mul_f32 v%d, v%d, v%d" % (O + i, O + i, vT2))
            a.e("v_mul_f32 v%d, v%d, v%d" % (vL0, vL0, vT2))
            a.e("v_mul_f32 v%d, v%d, v%d" % (vL1, vL1, vT2))
        a.e("s_nop 1")

    def rescale_check(buf):
        n = a.nlabel
        a.nlabel += 1
        a.e("v_cmp_lt_f32 vcc, %s, v%d" % (f32(float(P('A_T', 48))), vT0))
        a.e("s_cbranch_vccnz L_resc_%d" % n)
        a.label("L_resc_ret_%d" % n)
        rescale_sites.append((n, buf))

    PD = P('A_PD', 4)
    q = [kread(2, m) for m in range(PD)]
    for m in range(16):
        if m + PD < 16:
            q.append(kread(2, m + PD))
        f, tag = q[m]
        a.wait_lds(tag)
        kb, ks = m >> 3, m & 7
        acc = SB[0] + 16 * kb
        a.e("v_mfma_f32_32x32x16_bf16 %s, %s, %s, %s" % (vr(acc, 16), vr(f, 4), vr(Q + 4 * ks, 4), "0" if ks == 0 else vr(acc, 16)))
    a.e("s_nop 15")
    a.e("s_nop 3")
    for op in max_ops(SB[0]):
        a.e(op)
    rescale_body(SB[0], True)
    carry = [kread(3, m) for m in range(PD)]
    a.e("s_mov_b32 s%d, 0" % sJ)
    stamp()
    if STAMP:
        a.e("s_memrealtime s[80:81]")
    a.nolds = True
    a.label("L_attn_loop")
    UNR = 4
    for u in range(UNR):
        cur, nxt = SB[u & 1], SB[(u + 1) & 1]
        if u == UNR - 1:
            a.e("s_cmp_eq_u32 s%d, %d" % (sJ, 32 - UNR))
            a.e("s_cbranch_scc1 L_attn_tail")
            tail_pend = list(a.pend)
            tail_ctr = fr_ctr[0]
        kslot = (u + 1 + 2) & 3
        kslot_n = (u + 2 + 2) & 3
        vslot = u & 3
        sm = softmax_ops(cur)
        mx = max_ops(nxt)
        fill = [[] for _ in range(32)]
        CE = P('A_CE', 16)
        cost = lambda op: CE if op.startswith('v_exp') else (2 if op.startswith('s_nop') else 4)
        NS = P('A_NS', 27)
        tot = sum(cost(o) for o in sm)
        cum = 0
        for op in sm:
            fill[min(int((cum + cost(op) / 2) * NS / tot), NS - 1)].append(op)
            cum += cost(op)
        tot = sum(cost(o) for o in mx)
        cum = 0
        for op in mx:
            fill[min(NS + int((cum + cost(op) / 2) * (32 - NS) / tot), 31)].append(op)
            cum += cost(op)
        for t in range(32):
            for op in fill[t]:
                if op.startswith('v_cvt'):
                    dreg = int(op.split()[1].strip(',')[1:]) - cur
                    assert t <= 16 + 4 * (dreg // 4) - 1, (t, op)
        frags = list(carry)
        carry = []
        dpos = {P('A_D0', 1): 1, P('A_D1', 7): 2, P('A_D2', 13): 3}
        for m in range(32):
            mm = m + PD
            if mm < 16:
                frags.append(kread(kslot, mm))
            elif mm < 32:
                frags.append(vread(vslot, mm - 16))
            else:
                carry.append(kread(kslot_n, mm - 32))
            f, tag = frags[m]
            a.wait_lds(tag)
            if m < 16:
                kb, ks = m >> 3, m & 7
                acc = nxt + 16 * kb
                a.e("v_mfma_f32_32x32x16_bf16 %s, %s, %s, %s" % (vr(acc, 16), vr(f, 4), vr(Q + 4 * ks, 4), vr(NEGM, 16) if ks == 0 else vr(acc, 16)))
            else:
                s_, db = (m - 16) >> 2, (m - 16) & 3
                acc = O + 16 * db
                a.e("v_mfma_f32_32x32x16_bf16 %s, %s, %s, %s" % (vr(acc, 16), vr(f, 4), vr(cur + 4 * s_, 4), vr(acc, 16)))
            for op in fill[m]:
                if P('X_NOVALU', 0) and not op.startswith('s_'):
                    continue
                if P('X_NOEXP', 0) and op.startswith('v_exp'):
                    continue
                a.e(op)
            if m in dpos and not P('X_NODMA', 0):
                pc = dpos[m]
                if pc == 1:
                    a.e("buffer_load_dwordx4 v%d, s[%d:%d], s%d offen offset:1024 lds" % (vDK1, rK, rK + 3, sKoff))
                    a.e("s_add_u32 s%d, s%d, 16384" % (sKoff, sKoff))
                elif pc == 2:
                    a.e("s_add_u32 m0, s%d, %d" % (sM0V, ((u + 2) & 3) * 16384))
                    a.e("s_nop 0")
                    a.e("buffer_load_dwordx4 v%d, s[%d:%d], s%d offen lds" % (vDV, rV, rV + 3, sVoff))
                else:
                    a.e("buffer_load_dwordx4 v%d, s[%d:%d], s%d offen offset:1024 lds" % (vDV, rV, rV + 3, sVoff))
                    a.e("s_add_u32 s%d, s%d, 16384" % (sVoff, sVoff))
            if m == 32 - PD - 1:
                if not P('X_NOBAR2', 0):
                    a.e("s_waitcnt vmcnt(4)")
                    a.e("s_barrier")
                if u == 1:
                    a.e("s_cmp_lg_u32 s%d, 0" % sJ)
                    a.e("s_cbranch_scc1 L_wp_skip")
                    wprep_finish()
                    a.label("L_wp_skip")
            if m == 32 - PD + 1 and not P('X_NODMA', 0):
                a.e("s_add_u32 m0, s%d, %d" % (sM0K, ((u + 4 + 2) & 3) * 16384))
                a.e("s_nop 0")
                a.e("buffer_load_dwordx4 v%d, s[%d:%d], s%d offen lds" % (vDK0, rK, rK + 3, sKoff))
        rescale_check(nxt)
    a.e("s_add_u32 s%d, s%d, %d" % (sJ, sJ, UNR))
    a.e("s_branch L_attn_loop")
    a.label("L_attn_tail")
    a.pend = tail_pend
    fr_ctr[0] = tail_ctr
    a.wait_lds_all()
    cur = SB[(UNR - 1) & 1]
    sm = softmax_ops(cur)
    per = len(sm) // 4
    vq = [vread((UNR - 1) & 3, m) for m in range(PD)]
    for op in sm[:per]:
        a.e(op)
    for m in range(16):
        if m + PD < 16:
            vq.append(vread((UNR - 1) & 3, m + PD))
        f, tag = vq[m]
        a.wait_lds(tag)
        s_, db = m >> 2, m & 3
        a.e("v_mfma_f32_32x32x16_bf16 %s, %s, %s, %s" % (vr(O + 16 * db, 16), vr(f, 4), vr(cur + 4 * s_, 4), vr(O + 16 * db, 16)))
        if s_ < 3:
            seg = sm[per * (s_ + 1): per * (s_ + 2)]
            k0, k1 = len(seg) * db // 4, len(seg) * (db + 1) // 4
            for op in seg[k0:k1]:
                a.e(op)
            if db == 3:
                a.e("s_nop 1")
    a.label("L_attn_done")
    a.nolds = False
    stamp()
    if STAMP:
        a.e("s_memrealtime s[82:83]")
    a.wait_lds_all()
    a.e("s_nop 15")
    a.e("s_nop 3")
    a.e("v_add_f32 v%d, v%d, v%d" % (vL0, vL0, vL1))
    a.e("v_mov_b32 v%d, v%d" % (vT1, vL0))
    a.e("s_nop 1")
    a.e("v_permlane32_swap_b32 v%d, v%d" % (vL0, vT1))
    a.e("s_nop 1")
    a.e("v_add_f32 v%d, v%d, v%d" % (vL0, vL0, vT1))
    a.e("v_rcp_f32 v%d, v%d" % (vL0, vL0))
    a.e("s_nop 0")
    for db in range(4):
        for i in range(16):
            a.e("v_mul_f32 v%d, v%d, v%d" % (O + 16 * db + i, O + 16 * db + i, vL0))
        for p in range(8):
            a.e("v_cvt_pk_bf16_f32 v%d, v%d, v%d" % (O + 16 * db + p, O + 16 * db + 2 * p, O + 16 * db + 2 * p + 1))
        if db == 2:
            a.e("s_add_u32 s%d, s%d, 4096" % (sOB, sOB))
        a.e("buffer_store_dwordx4 %s, v%d, s[%d:%d], s%d offen offset:%d" % (vr(O + 16 * db, 4), vOo, rO, rO + 3, sOB, (db & 1) * 2048))
        a.e("buffer_store_dwordx4 %s, v%d, s[%d:%d], s%d offen offset:%d" % (vr(O + 16 * db + 4, 4), vOo, rO, rO + 3, sOB, (db & 1) * 2048 + 1024))
    if STAMP:
        stamp()
        a.e("s_waitcnt vmcnt(0) lgkmcnt(0)")
        stamp()
        a.e("s_waitcnt lgkmcnt(0)")
        make_srd(a, 88, sWS, sWS + 1, 1 << 20, 0x3000000)
        a.e("s_lshl_b32 s%d, s2, 3" % sT0)
        a.e("s_add_u32 s%d, s%d, s%d" % (sT0, sT0, sW))
        a.e("s_lshl_b32 s%d, s%d, 6" % (sT0, sT0))
        a.e("v_mov_b32 v%d, s%d" % (vT0, sT0))
        a.e("s_sub_u32 s%d, s82, s80" % (60 + 2 * stamp_n[0]))
        for i in range(stamp_n[0] + 1):
            a.e("v_mov_b32 v%d, s%d" % (vT1, 60 + 2 * i))
            a.e("buffer_store_dword v%d, v%d, s[88:91], 0 offen offset:%d" % (vT1, vT0, 4 * i))
            a.e("s_nop 1")
    a.e("s_branch L_attn_end")
    for n, buf in rescale_sites:
        a.label("L_resc_%d" % n)
        a.e("s_nop 15")
        a.e("s_nop 3")
        rescale_body(buf, False)
        a.e("s_branch L_resc_ret_%d" % n)
    a.label("L_attn_end")
    a.e("s_endpgm")
    return name, (NWG, 512, 163840), 256


def gen_out(a):
    name = "outp_kernel"
    kernel_header(a, name)
    NWG = 256
    sX, sWO, sWD, sOut, sWS = 4, 6, 8, 10, 12
    rX, rWO, rWD, rOut, rOW, rHW = 16, 20, 24, 28, 32, 36
    sTB, sNB, sW, sT0, sT1, sT2 = 40, 41, 42, 43, 44, 45
    sLB = 46
    sAct = [47, 48]
    sWt = [49, 50]
    a.e("s_cmp_ge_u32 s2, %d" % NWG)
    a.e("s_cbranch_scc1 L_outp_end")
    a.e("s_load_dwordx2 s[%d:%d], s[0:1], 0" % (sX, sX + 1))
    a.e("s_load_dwordx2 s[%d:%d], s[0:1], 32" % (sWO, sWO + 1))
    a.e("s_load_dwordx2 s[%d:%d], s[0:1], 64" % (sWD, sWD + 1))
    a.e("s_load_dwordx2 s[%d:%d], s[0:1], 72" % (sOut, sOut + 1))
    a.e("s_load_dwordx2 s[%d:%d], s[0:1], 88" % (sWS, sWS + 1))
    NST = P('C_NST', 3)
    ACC = [0, 64]
    FB = 128
    vb = FB + 32 * NST
    vLane, vT0, vT1, vT2, vT3, vT4 = vb, vb + 1, vb + 2, vb + 3, vb + 4, vb + 5
    vL16 = vb + 9
    vXo = vb + 10
    vR = vb + 11
    XR = vb + 12
    NV = vb + 16
    a.e("v_and_b32 v%d, 63, v0" % vLane)
    a.e("v_lshrrev_b32 v%d, 6, v0" % vT0)
    a.e("s_and_b32 s%d, s2, 31" % sTB)
    a.e("s_lshr_b32 s%d, s2, 5" % sNB)
    a.e("v_readfirstlane_b32 s%d, v%d" % (sW, vT0))
    a.e("s_waitcnt lgkmcnt(0)")
    make_srd(a, rX, sX, sX + 1, S * D * 2)
    make_srd(a, rWO, sWS, sWS + 1, W_BYTES, WS_W)
    make_srd(a, rOut, sOut, sOut + 1, S * D * 2)
    make_srd(a, rOW, sWS, sWS + 1, O_BYTES, WS_O)
    make_srd(a, rHW, sWS, sWS + 1, H_BYTES, WS_H)
    a.e("v_lshlrev_b32 v%d, 4, v%d" % (vL16, vLane))
    RBS = (256 * 1024, 112 * 1024)
    for mi in range(2):
        a.e("s_mul_i32 s%d, s%d, %d" % (sAct[mi], sTB, 2 * RBS[mi]))
        a.e("s_lshl_b32 s%d, s%d, 11" % (sT0, sW))
        a.e("s_add_u32 s%d, s%d, s%d" % (sAct[mi], sAct[mi], sT0))
    a.e("s_mul_i32 s%d, s%d, %d" % (sWt[0], sNB, 2 * 368 * 1024))
    a.e("s_lshl_b32 s%d, s%d, 11" % (sT0, sW))
    a.e("s_add_u32 s%d, s%d, s%d" % (sWt[0], sWt[0], sT0))
    chunks = [(0, c) for c in range(16)] + [(1, c) for c in range(7)]

    def issue(n):
        mi, c = chunks[n]
        st = n % NST
        rAct = (rOW, rHW)[mi]
        for nb in range(2):
            a.e("s_add_u32 s%d, s%d, %d" % (sT0, sWt[0], (mi * 256 + c * 16) * 1024 + nb * 368 * 1024))
            for ks in range(2):
                a.e("buffer_load_dwordx4 %s, v%d, s[%d:%d], s%d offen offset:%d" % (vr(FB + 32 * st + 16 + 8 * ks + 4 * nb, 4), vL16, rWO, rWO + 3, sT0, ks * 1024))
        for tb in range(2):
            a.e("s_add_u32 s%d, s%d, %d" % (sT0, sAct[mi], c * 16384 + tb * RBS[mi]))
            for ks in range(2):
                a.e("buffer_load_dwordx4 %s, v%d, s[%d:%d], s%d offen offset:%d" % (vr(FB + 32 * st + 8 * ks + 4 * tb, 4), vL16, rAct, rAct + 3, sT0, ks * 1024))

    for n in range(NST - 1):
        issue(n)
    for n in range(len(chunks)):
        if n + NST - 1 < len(chunks):
            issue(n + NST - 1)
        left = min(NST - 1, len(chunks) - 1 - n)
        a.e("s_waitcnt vmcnt(%d)" % (8 * left))
        mi, c = chunks[n]
        st = n % NST
        for ks in range(2):
            for nb in range(2):
                for tb in range(2):
                    d = ACC[mi] + 16 * (nb * 2 + tb)
                    a.e("v_mfma_f32_32x32x16_bf16 %s, %s, %s, %s" % (vr(d, 16), vr(FB + 32 * st + 16 + 8 * ks + 4 * nb, 4), vr(FB + 32 * st + 8 * ks + 4 * tb, 4), "0" if (c == 0 and ks == 0) else vr(d, 16)))
    a.e("s_nop 15")
    a.e("s_nop 3")
    a.e("s_bfe_u32 s%d, s%d, 0x10001" % (sT0, sW))
    a.e("s_lshl_b32 s%d, s%d, 5" % (sT0, sT0))
    a.e("s_lshl_b32 s%d, s%d, 6" % (sT1, sTB))
    a.e("s_add_u32 s%d, s%d, s%d" % (sT0, sT0, sT1))
    a.e("v_and_b32 v%d, 31, v%d" % (vT0, vLane))
    a.e("v_add_u32 v%d, s%d, v%d" % (vT0, sT0, vT0))
    a.e("v_lshrrev_b32 v%d, 5, v%d" % (vT1, vLane))
    a.e("v_lshlrev_b32 v%d, 4, v%d" % (vT1, vT1))
    a.e("v_lshl_add_u32 v%d, v%d, 10, v%d" % (vXo, vT0, vT1))
    a.e("s_lshr_b32 s%d, s%d, 2" % (sT0, sW))
    a.e("s_lshl_b32 s%d, s%d, 6" % (sT0, sT0))
    a.e("s_and_b32 s%d, s%d, 1" % (sT1, sW))
    a.e("s_lshl_b32 s%d, s%d, 5" % (sT1, sT1))
    a.e("s_add_u32 s%d, s%d, s%d" % (sT0, sT0, sT1))
    a.e("s_lshl_b32 s%d, s%d, 7" % (sT1, sNB))
    a.e("s_add_u32 s%d, s%d, s%d" % (sT0, sT0, sT1))
    a.e("v_add_u32 v%d, s%d, v%d" % (vXo, sT0, vXo))
    a.e("buffer_load_dwordx4 %s, v%d, s[%d:%d], 0 offen" % (vr(XR, 4), vXo, rX, rX + 3))
    a.e("s_lshl_b32 s%d, s%d, 14" % (sT0, sW))
    a.e("v_add_u32 v%d, s%d, v%d" % (vT0, sT0, vL16))
    a.e("s_lshl_b32 s%d, s%d, 11" % (sT0, sW))
    a.e("v_add_u32 v%d, s%d, v%d" % (vR, sT0, vL16))
    a.e("v_add_u32 v%d, 0x10000, v%d" % (vT4, vR))
    for part in range(2):
        a.e("s_barrier")
        for i in range(16):
            a.e("ds_write_b128 v%d, %s offset:%d" % (vT0, vr(ACC[part] + 4 * i, 4), i * 1024))
        a.e("s_waitcnt lgkmcnt(0)")
        a.e("s_barrier")
        for src in range(8):
            for i in range(2):
                a.e("ds_read_b128 %s, v%d offset:%d" % (vr(ACC[part] + 8 * src + 4 * i, 4), vR if src < 4 else vT4, (src & 3) * 16384 + i * 1024))
            if src == 6:
                a.e("s_waitcnt lgkmcnt(0)")
        a.e("s_waitcnt lgkmcnt(0)")
        B = ACC[part]
        for i in range(8):
            a.e("v_add_f32 v%d, v%d, v%d" % (B + i, B + i, B + 8 + i))
            a.e("v_add_f32 v%d, v%d, v%d" % (B + 16 + i, B + 16 + i, B + 24 + i))
            a.e("v_add_f32 v%d, v%d, v%d" % (B + 32 + i, B + 32 + i, B + 40 + i))
            a.e("v_add_f32 v%d, v%d, v%d" % (B + 48 + i, B + 48 + i, B + 56 + i))
        for i in range(8):
            a.e("v_add_f32 v%d, v%d, v%d" % (B + i, B + i, B + 16 + i))
            a.e("v_add_f32 v%d, v%d, v%d" % (B + 32 + i, B + 32 + i, B + 48 + i))
        for i in range(8):
            a.e("v_add_f32 v%d, v%d, v%d" % (B + i, B + i, B + 32 + i))
    a.e("s_waitcnt vmcnt(0)")
    a.e("s_mov_b32 s%d, %s" % (sT2, f32(-math.log2(math.e))))
    for p in range(4):
        s0, s1, f0, f1 = 2 * p, 2 * p + 1, 64 + 2 * p, 64 + 2 * p + 1
        round_bf16_pair(a, s0, s1, s0, s1, vT0)
        round_bf16_pair(a, f0, f1, f0, f1, vT0)
        a.e("v_mul_f32 v%d, s%d, v%d" % (vT0, sT2, f0))
        a.e("v_mul_f32 v%d, s%d, v%d" % (vT1, sT2, f1))
        a.e("v_exp_f32 v%d, v%d" % (vT0, vT0))
        a.e("v_exp_f32 v%d, v%d" % (vT1, vT1))
        a.e("s_nop 0")
        a.e("v_add_f32 v%d, 1.0, v%d" % (vT0, vT0))
        a.e("v_add_f32 v%d, 1.0, v%d" % (vT1, vT1))
        a.e("v_rcp_f32 v%d, v%d" % (vT0, vT0))
        a.e("v_rcp_f32 v%d, v%d" % (vT1, vT1))
        a.e("s_nop 0")
        a.e("v_mul_f32 v%d, v%d, v%d" % (f0, f0, vT0))
        a.e("v_mul_f32 v%d, v%d, v%d" % (f1, f1, vT1))
        round_bf16_pair(a, f0, f1, f0, f1, vT0)
        a.e("v_mul_f32 v%d, v%d, v%d" % (s0, s0, f0))
        a.e("v_mul_f32 v%d, v%d, v%d" % (s1, s1, f1))
        round_bf16_pair(a, s0, s1, s0, s1, vT0)
        a.e("v_lshlrev_b32 v%d, 16, v%d" % (vT0, XR + p))
        a.e("v_and_b32 v%d, 0xffff0000, v%d" % (vT1, XR + p))
        a.e("v_add_f32 v%d, v%d, v%d" % (s0, s0, vT0))
        a.e("v_add_f32 v%d, v%d, v%d" % (s1, s1, vT1))
        a.e("v_cvt_pk_bf16_f32 v%d, v%d, v%d" % (XR + p, s0, s1))
    a.e("buffer_store_dwordx4 %s, v%d, s[%d:%d], 0 offen" % (vr(XR, 4), vXo, rOut, rOut + 3))
    a.label("L_outp_end")
    a.e("s_endpgm")
    return name, (NWG, 512, 131072), NV


def main():
    a = Asm()
    ks = []
    for g in (gen_ln, gen_attn, gen_out):
        a.pend = []
        ks.append(g(a))
    head = []
    for name, (nwg, blk, lds), _ in ks:
        head.append("; @launch kernel=%s grid=(%d,1,1) block=(%d,1,1) lds=%d" % (name, nwg, blk, lds))
    head.append('.amdgcn_target "amdgcn-amd-amdhsa--gfx950"')
    head.append(".text")
    tail = ['.section .rodata,"a"']
    for name, _, vg in ks:
        tail.append(".p2align 6")
        tail.append(kernel_desc(name, vg))
    open(OUT, "w").write("\n".join(head + a.lines + tail) + "\n")


if __name__ == "__main__":
    main()
```
